```python
import torch

def _softmax(x, axis=-1):
    return torch.softmax(x, dim=axis)
def _gelu(x):
    return torch.nn.functional.gelu(x, approximate="tanh")
def _silu(x):
    return torch.nn.functional.silu(x)
def _sigmoid(x):
    return torch.sigmoid(x)
def _layernorm(x, axis=-1, eps=1e-5):
    m = x.mean(dim=axis, keepdim=True)
    v = x.var(dim=axis, keepdim=True, unbiased=False)
    return (x - m) / torch.sqrt(v + eps)
def _scatter_add(tgt, idx, src, axis=0):
    return tgt.clone().index_add_(axis, idx, src)
def _segment_sum(src, seg, n):
    out = torch.zeros((n,) + src.shape[1:], dtype=src.dtype)
    return out.index_add_(0, seg, src)
def _pad(x, pw):
    flat = tuple(v for pair in reversed(pw) for v in pair)
    return torch.nn.functional.pad(x, flat)

kernel_name = 'recurrent_scan__ssm_conv_s4d__moe_arch_mod__prompt'

def setup_inputs():

    _w = (lambda a: (lambda t: t.to(torch.bfloat16) if t.is_floating_point() else t)(torch.as_tensor(a)))
    def _A_setup():
        Bsz, L, D, N = 1, 2048, 512, 128
        return {
            "u": _w((lambda *s: torch.randn(*s, dtype=torch.bfloat16) * 0.05)(Bsz, L, D)),
            "log_A_real": _w((lambda *s: torch.randn(*s, dtype=torch.bfloat16) * 3.2)(D, N) * 0.5),
            "A_imag": _w((lambda *s: torch.randn(*s, dtype=torch.bfloat16) * 0.05)(D, N) * 3.14),
            "C_real": _w((lambda *s: torch.randn(*s, dtype=torch.bfloat16) * 0.1)(D, N) / N ** 0.5),
            "C_imag": _w((lambda *s: torch.randn(*s, dtype=torch.bfloat16) * 0.1)(D, N) / N ** 0.5),
            "log_dt": _w((lambda *s: torch.randn(*s, dtype=torch.bfloat16) * 0.05)(D) * 0.5 - 4.0),
            "D_skip": _w((lambda *s: torch.randn(*s, dtype=torch.bfloat16) * 0.05)(D)),
        }
    _A_in = _A_setup()

    def _B_setup():
        B, S, D, F, C = 1, 2048, 512, 1376, 2
        return {
            "x": _w((lambda *s: torch.randn(*s, dtype=torch.bfloat16) * 0.05)(B, S, D)),
            "w_r": _w((lambda *s: torch.randn(*s, dtype=torch.bfloat16) * 3.2)(D)),
            "w_gate": _w((lambda *s: torch.randn(*s, dtype=torch.bfloat16) * 0.1)(D, F)),
            "w_up": _w((lambda *s: torch.randn(*s, dtype=torch.bfloat16) * 0.1)(D, F)),
            "w_down": _w((lambda *s: torch.randn(*s, dtype=torch.bfloat16) * 0.1)(F, D)),
        }
    _B_in = _B_setup()

    return {
        "A_u": _A_in["u"],
        "A_log_A_real": _A_in["log_A_real"],
        "A_A_imag": _A_in["A_imag"],
        "A_C_real": _A_in["C_real"],
        "A_C_imag": _A_in["C_imag"],
        "A_log_dt": _A_in["log_dt"],
        "A_D_skip": _A_in["D_skip"],
        "B_x": _B_in["x"],
        "B_w_r": _B_in["w_r"],
        "B_w_gate": _B_in["w_gate"],
        "B_w_up": _B_in["w_up"],
        "B_w_down": _B_in["w_down"],
    }

def reference(A_u, A_log_A_real, A_A_imag, A_C_real, A_C_imag, A_log_dt, A_D_skip, B_x, B_w_r, B_w_gate, B_w_up, B_w_down):
    def _A_ref(u, log_A_real, A_imag, C_real, C_imag, log_dt, D_skip):
        L = u.shape[1]
        dt = torch.exp(log_dt)
        A = -torch.exp(log_A_real) + 1j * A_imag
        C = (C_real + 1j * C_imag) * dt[:, None]
        pos = (lambda x, dt: x.to(dt))(torch.arange(L), log_dt.dtype)
        P = torch.exp((A * dt[:, None])[:, :, None] * pos[None, None, :])
        K = 2.0 * torch.einsum("dn,dnl->dl", C, P).real
        L2 = 2 * L
        u_t = (lambda x, *d: x.permute(*d))(u, 0, 2, 1)
        Kf = (lambda x, *a, **k: torch.fft.rfft(x.float(), *a, **k))(K, L2)
        Uf = (lambda x, *a, **k: torch.fft.rfft(x.float(), *a, **k))(u_t, L2)
        y = (lambda x, *a, **k: torch.fft.irfft(x, *a, **k).to(torch.bfloat16))(Uf * Kf[None, :, :], L2)[:, :, :L]
        y = (lambda x, *d: x.permute(*d))(y, 0, 2, 1)
        return y + u * D_skip[None, None, :]

    def _B_ref(x, w_r, w_gate, w_up, w_down):
        B, S, D = x.shape
        C = 2
        r = x @ w_r
        idx = torch.argsort(-r, axis=-1)[:, :C]
        idx_e = (lambda x, n, axis: torch.repeat_interleave(x, n, dim=axis))(idx.reshape(B, C, 1), D, axis=2)
        x_sel = (lambda x, i, axis: torch.take_along_dim(x, i, dim=axis))(x, idx_e, axis=1)
        g = _silu(x_sel @ w_gate)
        u = x_sel @ w_up
        y = (g * u) @ w_down
        r_sel = _sigmoid((lambda x, i, axis: torch.take_along_dim(x, i, dim=axis))(r, idx, axis=1))
        y = y * r_sel.reshape(B, C, 1)
        b_off = (torch.arange(B) * S).reshape(B, 1)
        flat_idx = (idx + b_off).reshape(B * C)
        zero = (x * 0.0).reshape(B * S, D)
        upd = _scatter_add(zero, flat_idx, y.reshape(B * C, D), axis=0)
        return x + upd.reshape(B, S, D)

    x = A_u
    xn = _layernorm(x, axis=-1)
    s = _A_ref(xn, A_log_A_real, A_A_imag, A_C_real, A_C_imag, A_log_dt, A_D_skip)
    g = _silu(_B_ref(xn, B_w_r, B_w_gate, B_w_up, B_w_down))
    return x + s * g
```

```python
class Asm:
    def __init__(self):
        self.lines = []
        self._uid = 0
    def __call__(self, s):
        for ln in s.strip("\n").split("\n"):
            ln = ln.strip()
            if not ln:
                continue
            if ln.endswith(":") or ln.startswith("."):
                self.lines.append(ln)
            else:
                self.lines.append("    " + ln)
    def label(self, name):
        self.lines.append(name + ":")
    def uid(self, p="L"):
        self._uid += 1
        return f"{p}_{self._uid}"
    def text(self):
        return "\n".join(self.lines) + "\n"
    def srd(self, d, b, nbytes, add=0):
        if add:
            self(f"s_add_u32 s{d}, s{b}, {hex(add)}")
            self(f"s_addc_u32 s{d+1}, s{b+1}, 0")
        else:
            if d != b:
                self(f"s_mov_b32 s{d}, s{b}")
                self(f"s_mov_b32 s{d+1}, s{b+1}")
        self(f"s_mov_b32 s{d+2}, {hex(nbytes)}")
        self(f"s_mov_b32 s{d+3}, 0x00020000")

def vr(a, n=1):
    return f"v{a}" if n == 1 else f"v[{a}:{a+n-1}]"
def sr(a, n=1):
    return f"s{a}" if n == 1 else f"s[{a}:{a+n-1}]"
DPP = "row_mask:0xf bank_mask:0xf"

import struct
def f2u(x):
    return struct.unpack("<I", struct.pack("<f", x))[0]
def fh(x):
    return hex(f2u(x))

def kernel_desc(name, vgpr, sgpr, accum=None):
    accum = accum or ((vgpr + 3) // 4 * 4)
    return f""".p2align 6
.amdhsa_kernel {name}
  .amdhsa_next_free_vgpr {vgpr}
  .amdhsa_next_free_sgpr {sgpr}
  .amdhsa_accum_offset {accum}
  .amdhsa_group_segment_fixed_size 0
  .amdhsa_kernarg_size 120
  .amdhsa_user_sgpr_count 2
  .amdhsa_user_sgpr_kernarg_segment_ptr 1
  .amdhsa_system_sgpr_workgroup_id_x 1
.end_amdhsa_kernel
"""
```

```python
from asmlib import *
from layout import *

K1_LDS = 2 * 64 * 528
ROWS = 528

def cmul(a, dst, src, mul, tmp):
    return [f"v_pk_mul_f32 {vr(tmp,2)}, {vr(src,2)}, {vr(mul,2)} op_sel:[1,1] op_sel_hi:[0,1] neg_lo:[1,0]",
            f"v_pk_fma_f32 {vr(dst,2)}, {vr(src,2)}, {vr(mul,2)}, {vr(tmp,2)} op_sel:[0,0,0] op_sel_hi:[1,0,1]"]

def gen_k1(a, name, stamps=False):
    a(f".globl {name}\n.p2align 8\n.type {name},@function\n{name}:")
    a(f"""
    s_cmp_ge_u32 s2, 512
    s_cbranch_scc1 K1_END
    s_cmp_ge_u32 s2, 256
    s_cbranch_scc1 K1_LN
    """)
    a(f"""
    s_load_dwordx2 s[8:9], s[0:1], 40
    s_load_dwordx2 s[12:13], s[0:1], 8
    s_load_dwordx2 s[16:17], s[0:1], 16
    s_load_dwordx2 s[20:21], s[0:1], 24
    s_load_dwordx2 s[24:25], s[0:1], 32
    s_load_dwordx2 s[28:29], s[0:1], 112
    s_mov_b32 s14, 0x20000
    s_mov_b32 s15, 0x00020000
    s_mov_b32 s18, 0x20000
    s_mov_b32 s19, 0x00020000
    s_mov_b32 s22, 0x20000
    s_mov_b32 s23, 0x00020000
    s_mov_b32 s26, 0x20000
    s_mov_b32 s27, 0x00020000
    s_mov_b32 s30, {hex(WS_SIZE)}
    s_mov_b32 s31, 0x00020000
    s_and_b32 s32, s2, 7
    s_lshl_b32 s32, s32, 5
    s_lshr_b32 s33, s2, 3
    s_add_u32 s32, s32, s33
    s_lshl_b32 s33, s32, 9
    s_lshl_b32 s34, s32, 2             ; c*4
    v_lshrrev_b32 v1, 6, v0            ; wave
    v_and_b32 v2, 63, v0               ; lane
    v_readfirstlane_b32 s35, v1
    v_lshrrev_b32 v3, 8, v0            ; ch
    v_lshlrev_b32 v3, 8, v3
    v_lshl_add_u32 v3, v2, 2, v3
    s_waitcnt lgkmcnt(0)
    s_load_dword s10, s[8:9], s34
    buffer_load_dword v4, v3, s[12:15], s33 offen
    buffer_load_dword v5, v3, s[16:19], s33 offen
    buffer_load_dword v6, v3, s[20:23], s33 offen
    buffer_load_dword v7, v3, s[24:27], s33 offen
    s_and_b32 s36, s35, 3              ; role
    s_lshr_b32 s37, s35, 2             ; ch
    s_mul_i32 s38, s37, {64*ROWS}
    v_lshlrev_b32 v8, 3, v2
    v_add_u32 v8, s38, v8
    s_mov_b32 s40, {fh(LOG2E)}
    s_mov_b32 s41, 0xffff0000
    s_lshl_b32 s39, s37, 4
    s_waitcnt lgkmcnt(0)
    s_lshr_b32 s10, s10, s39
    s_lshl_b32 s10, s10, 16
    v_mov_b32 v9, s10
    v_mul_f32 v9, s40, v9
    v_exp_f32 v9, v9
    s_mov_b32 s42, {fh(INV2PI)}
    s_mov_b32 s43, {fh(-INV2PI)}
    s_cmp_ge_u32 s36, 2
    s_cselect_b32 s42, s43, s42
    v_cvt_pk_bf16_f32 v9, v9, v9
    v_lshlrev_b32 v9, 16, v9
    s_waitcnt vmcnt(2)
    v_lshlrev_b32 v10, 16, v4
    v_and_b32 v11, s41, v4
    v_mul_f32 v10, s40, v10
    v_mul_f32 v11, s40, v11
    v_exp_f32 v10, v10
    v_exp_f32 v11, v11
    v_lshlrev_b32 v12, 16, v5
    v_and_b32 v13, s41, v5
    v_cvt_pk_bf16_f32 v10, v10, v11
    v_mul_f32 v12, v12, v9             ; zi
    v_mul_f32 v13, v13, v9
    v_and_b32 v11, s41, v10
    v_lshlrev_b32 v10, 16, v10
    v_mul_f32 v12, s42, v12
    v_mul_f32 v13, s42, v13
    v_mul_f32 v10, v10, v9             ; -zr
    v_mul_f32 v11, v11, v9
    v_mul_f32 v10, {fh(-LOG2E)}, v10   ; zr2
    v_mul_f32 v11, {fh(-LOG2E)}, v11
    """)
    ZR, ZI = 10, 12
    T = 14
    def direct(dst, p):
        a(f"""
        v_mul_f32 v{T}, {p}, v{ZR}
        v_mul_f32 v{T+1}, {p}, v{ZR+1}
        v_mul_f32 v{T+2}, {p}, v{ZI}
        v_mul_f32 v{T+3}, {p}, v{ZI+1}
        v_exp_f32 v{T}, v{T}
        v_exp_f32 v{T+1}, v{T+1}
        v_fract_f32 v{T+2}, v{T+2}
        v_fract_f32 v{T+3}, v{T+3}
        v_cos_f32 v{dst}, v{T+2}
        v_sin_f32 v{dst+1}, v{T+2}
        v_cos_f32 v{dst+2}, v{T+3}
        v_sin_f32 v{dst+3}, v{T+3}
        v_mul_f32 v{dst}, v{dst}, v{T}
        v_mul_f32 v{dst+1}, v{dst+1}, v{T}
        v_mul_f32 v{dst+2}, v{dst+2}, v{T+1}
        v_mul_f32 v{dst+3}, v{dst+3}, v{T+1}
        """)
    TM = 20
    pk_toggle = [0]
    def cmul2(dst, src, mul):
        l0 = cmul(a, dst, src, mul, TM)
        l1 = cmul(a, dst + 2, src + 2, mul + 2, TM + 2)
        a(l0[0]); a(l1[0]); a(l0[1]); a(l1[1])
    def emit_row(src, slots, addr=8):
        p = 24 + 2 * pk_toggle[0]
        pk_toggle[0] ^= 1
        a(f"v_cvt_pk_bf16_f32 v{p}, v{src}, v{src+1}")
        a(f"v_cvt_pk_bf16_f32 v{p+1}, v{src+2}, v{src+3}")
        for s in slots:
            a(f"ds_write_b64 v{addr}, {vr(p,2)} offset:{s*ROWS}")
    V, M, M2, M3, U2, CC = 28, 32, 36, 40, 44, 48
    a("""
    s_cmp_eq_u32 s36, 2
    s_cbranch_scc1 K1_R2
    s_cmp_eq_u32 s36, 3
    s_cbranch_scc1 K1_R3
    """)
    a(f"""
    s_mul_i32 s44, s36, {fh(128.0)}    ; 0.0 or 128.0
    s_mul_i32 s45, s36, {16*ROWS}
    v_add_u32 v8, s45, v8
    """)
    direct(V, "s44")
    direct(M, fh(8.0))
    emit_row(V, [32])
    for i in range(1, 16):
        cmul2(V, V, M)
        emit_row(V, [32 + i])
    a("s_branch K1_ROWS_DONE")
    def load_c():
        a(f"""
        v_add_f32 v9, v9, v9
        s_waitcnt vmcnt(0)
        v_lshlrev_b32 v{CC}, 16, v6
        v_lshlrev_b32 v{CC+1}, 16, v7
        v_and_b32 v{CC+2}, s41, v6
        v_and_b32 v{CC+3}, s41, v7
        v_mul_f32 v{CC}, v{CC}, v9
        v_mul_f32 v{CC+1}, -v{CC+1}, v9
        v_mul_f32 v{CC+2}, v{CC+2}, v9
        v_mul_f32 v{CC+3}, -v{CC+3}, v9
        """)
    a("K1_R2:")
    direct(M, "1.0")
    direct(M2, "2.0")
    direct(M3, fh(256.0))
    load_c()
    emit_row(CC, [0])
    cmul2(U2, CC, M3)
    src = CC
    a_slots = {1: [1], 2: [2], 3: [3], 4: [4, 11], 5: [5], 6: [6], 7: [7], 8: [15]}
    b_slots = [[8], [9], [10, 12], [13], [14]]
    emit_row(U2, b_slots[0])
    for i in range(1, 9):
        cmul2(V, src, M)
        src = V
        emit_row(V, a_slots[i])
        if i <= 4:
            cmul2(U2, U2, M2)
            emit_row(U2, b_slots[i])
    a("s_branch K1_ROWS_DONE")
    a("K1_R3:")
    direct(M, "4.0")
    direct(M3, fh(256.0))
    direct(U2, fh(512.0))
    load_c()
    cmul2(M2, M, M)
    cmul2(U2, U2, CC)
    emit_row(U2, [16])
    cmul2(V, U2, M); emit_row(V, [17])
    cmul2(V, U2, M2); emit_row(V, [18])
    cmul2(U2, U2, M3); emit_row(U2, [20])
    cmul2(V, U2, M); emit_row(V, [21])
    cmul2(V, U2, M2); emit_row(V, [22])
    for k in range(4):
        cmul2(U2, U2, M3); emit_row(U2, [24 + 2 * k])
        cmul2(V, U2, M2); emit_row(V, [25 + 2 * k])
    a("K1_ROWS_DONE:")
    a(f"""
    v_and_b32 v3, 31, v2
    v_lshrrev_b32 v4, 5, v2
    v_mul_u32_u24 v5, {ROWS}, v3
    v_lshl_add_u32 v5, v4, 4, v5
    v_add_u32 v5, s38, v5
    s_waitcnt lgkmcnt(0)
    s_barrier
    s_cmp_lg_u32 s36, s37
    s_cbranch_scc1 K1_SENT
    """)
    ACC = 8
    FR = 24
    NB = 6
    def rd(s):
        r = FR + 8 * (s % NB)
        a(f"ds_read_b128 {vr(r,4)}, v5 offset:{32*s}")
        a(f"ds_read_b128 {vr(r+4,4)}, v5 offset:{32*ROWS + 32*s}")
    for s in range(NB):
        rd(s)
    a(f"""
    s_lshl_b32 s44, s32, 1
    s_add_u32 s44, s44, s37            ; d
    s_mul_i32 s44, s44, {KG_STRIDE}
    s_add_u32 s44, s44, {hex(WS_KG)}   ; G base
    s_add_u32 s45, s44, {KG_H}         ; H base
    v_lshlrev_b32 v6, 4, v3            ; 16*b
    v_lshl_add_u32 v7, v4, 3, v6       ; 16b + 8h
    v_sub_u32 v7, {2*(2044-256)}, v7
    v_lshl_add_u32 v88, v4, 9, v6      ; 16b + 512h
    v_sub_u32 v88, {2*(2040-512)}, v88
    v_lshl_add_u32 v89, v4, 10, v6     ; 16b + 1024h
    v_sub_u32 v89, {2*(2040-1280)}, v89
    v_and_b32 v6, 1, v3
    v_cmp_eq_u32 vcc, 1, v6            ; b odd
    """)
    for s in range(16):
        rem = min(15 - s, NB - 1)
        a(f"s_waitcnt lgkmcnt({2*rem})")
        r = FR + 8 * (s % NB)
        c = "0" if s == 0 else vr(ACC, 16)
        a(f"v_mfma_f32_32x32x16_bf16 {vr(ACC,16)}, {vr(r,4)}, {vr(r+4,4)}, {c}")
        if s + NB < 16:
            rd(s + NB)
    a("s_nop 15")
    d = lambda i: f"v{ACC+i}"
    P = 24
    def pk(dst, lo, hi):
        a(f"v_cvt_pk_bf16_f32 v{dst}, {lo}, {hi}")
    pk(P, d(3), d(2)); pk(P+1, d(1), d(0))
    pk(P+2, d(7), d(3)); pk(P+3, d(2), d(1))
    a(f"buffer_store_dwordx2 {vr(P,2)}, v7, s[28:31], s44 offen offset:512")
    a(f"buffer_store_dwordx2 {vr(P+2,2)}, v7, s[28:31], s45 offen offset:512")
    pk(P+4, d(6), d(5)); pk(P+5, d(4), d(4))
    pk(P+6, d(6), d(6)); pk(P+7, d(5), d(4))
    a(f"buffer_store_dwordx2 {vr(P+4,2)}, v7, s[28:31], s44 offen")
    a(f"buffer_store_dwordx2 {vr(P+6,2)}, v7, s[28:31], s45 offen")
    Q = P + 8
    pk(Q, d(10), d(10)); pk(Q+1, d(9), d(9)); pk(Q+2, d(9), d(8)); pk(Q+3, d(8), d(8))
    pk(Q+4, d(10), d(10)); pk(Q+5, d(10), d(9)); pk(Q+6, d(9), d(9)); pk(Q+7, d(8), d(8))
    a(f"buffer_store_dwordx4 {vr(Q,4)}, v88, s[28:31], s44 offen")
    a(f"buffer_store_dwordx4 {vr(Q+4,4)}, v88, s[28:31], s45 offen")
    for k in range(2):
        Q = P + 16 + 8 * k
        r0, r1 = d(12 + 2 * k), d(13 + 2 * k)
        a(f"v_cndmask_b32 v6, {r0}, {r1}, vcc")
        pk(Q, r1, r1); pk(Q+1, r1, "v6"); pk(Q+2, r0, r0); pk(Q+3, r0, r0)
        pk(Q+4, r1, r1); pk(Q+5, r1, r1); pk(Q+6, "v6", r0); pk(Q+7, r0, r0)
        off = " offset:512" if k == 0 else ""
        a(f"buffer_store_dwordx4 {vr(Q,4)}, v89, s[28:31], s44 offen{off}")
        a(f"buffer_store_dwordx4 {vr(Q+4,4)}, v89, s[28:31], s45 offen{off}")
    Q = P + 32
    a(f"""
    v_cvt_pk_bf16_f32 v{Q}, {d(0)}, 0
    v_cmp_eq_u32 vcc, 0, v2
    v_mov_b32 v{Q+1}, 0
    v_mov_b32 v{Q+2}, 0
    v_cndmask_b32 v{Q}, 0, v{Q}, vcc
    v_mov_b32 v{Q+3}, 0
    v_mov_b32 v6, 4096
    v_mov_b32 v3, {4096+KG_H}
    v_cndmask_b32 v6, v6, v3, vcc
    s_mov_b64 exec, 3
    buffer_store_dwordx4 {vr(Q,4)}, v6, s[28:31], s44 offen
    s_endpgm
    K1_SENT:
    s_cmp_ge_u32 s35, 3
    s_cbranch_scc1 K1_END
    v_subrev_u32 v3, 64, v0
    v_cmp_gt_u32 vcc, {NSLICE}, v3
    v_lshlrev_b32 v3, 4, v3
    v_mov_b32 v24, -1
    v_mov_b32 v25, -1
    v_mov_b32 v26, -1
    v_mov_b32 v27, -1
    s_mul_i32 s44, s2, {NSLICE*16}
    s_add_u32 s44, s44, {hex(WS_PART)}
    s_and_b64 exec, exec, vcc
    buffer_store_dwordx4 v[24:27], v3, s[28:31], s44 offen
    s_endpgm
    """)
    RS = 2112
    KEYL = 8 * RS
    a("K1_LN:")
    a(f"""
    s_load_dwordx2 s[12:13], s[0:1], 0
    s_load_dwordx2 s[16:17], s[0:1], 64
    s_load_dwordx2 s[20:21], s[0:1], 112
    s_mov_b32 s14, 0x200000
    s_mov_b32 s15, 0x00020000
    s_mov_b32 s18, 1024
    s_mov_b32 s19, 0x00020000
    s_mov_b32 s22, {hex(WS_SIZE)}
    s_mov_b32 s23, 0x00020000
    s_sub_u32 s3, s2, 256
    s_and_b32 s24, s3, 7
    s_lshl_b32 s24, s24, 5
    s_lshr_b32 s25, s3, 3
    s_add_u32 s24, s24, s25
    s_lshl_b32 s26, s24, 13
    v_lshlrev_b32 v1, 4, v0
    v_and_b32 v2, 63, v0
    v_lshlrev_b32 v3, 4, v2
    v_lshrrev_b32 v20, 6, v0           ; wave
    s_waitcnt lgkmcnt(0)
    buffer_load_dwordx4 v[4:7], v1, s[12:15], s26 offen
    buffer_load_dwordx4 v[8:11], v3, s[16:19], 0 offen
    v_readfirstlane_b32 s35, v20
    v_mul_u32_u24 v21, {RS}, v20
    v_lshl_add_u32 v21, v2, 5, v21
    v_bfe_u32 v22, v2, 2, 2            ; r
    v_mul_u32_u24 v22, {RS}, v22
    v_lshrrev_b32 v23, 4, v2           ; G
    v_lshlrev_b32 v23, 2, v23
    v_and_b32 v28, 3, v2
    v_add_u32 v23, v23, v28
    v_lshl_add_u32 v23, v20, 5, v23    ; 32w + 4G + cc
    v_lshl_add_u32 v22, v23, 3, v22
    s_lshr_b32 s30, s24, 2
    v_add_u32 v28, s30, v28
    v_and_b32 v28, 3, v28
    v_lshlrev_b32 v28, 4, v28
    v_lshrrev_b32 v23, 2, v2
    v_lshl_add_u32 v23, v20, 5, v23    ; c = 32w + lane>>2
    v_lshl_add_u32 v23, v23, 14, v28
    s_lshl_b32 s36, s24, 6
    s_add_u32 s37, s36, 0x40000
    s_mov_b32 s41, 0xffff0000
    s_waitcnt vmcnt(1)
    """)
    F = 12
    a(f"""
    v_lshlrev_b32 v{F}, 16, v4
    v_and_b32 v{F+1}, s41, v4
    v_readfirstlane_b32 s30, v{F}
    v_lshlrev_b32 v{F+2}, 16, v5
    v_and_b32 v{F+3}, s41, v5
    v_lshlrev_b32 v{F+4}, 16, v6
    v_and_b32 v{F+5}, s41, v6
    v_lshlrev_b32 v{F+6}, 16, v7
    v_and_b32 v{F+7}, s41, v7
    """)
    D = 30
    for i in range(4):
        a(f"v_pk_add_f32 {vr(D+2*i,2)}, {vr(F+2*i,2)}, s[30:31] op_sel_hi:[1,0] neg_lo:[0,1] neg_hi:[0,1]")
    a(f"""
    v_pk_mul_f32 v[38:39], v[30:31], v[30:31]
    v_pk_add_f32 v[48:49], v[30:31], v[32:33]
    v_pk_fma_f32 v[38:39], v[32:33], v[32:33], v[38:39]
    v_pk_add_f32 v[50:51], v[34:35], v[36:37]
    v_pk_fma_f32 v[38:39], v[34:35], v[34:35], v[38:39]
    v_pk_add_f32 v[48:49], v[48:49], v[50:51]
    v_pk_fma_f32 v[38:39], v[36:37], v[36:37], v[38:39]
    v_add_f32 v48, v48, v49
    v_add_f32 v38, v38, v39
    v_mov_b32 v41, v4
    v_mov_b32 v43, v5
    v_permlane32_swap_b32 v48, v38
    v_mov_b32 v45, v6
    v_add_f32 v48, v48, v38
    v_mov_b32 v47, v7
    s_nop 0
    v_add_f32_dpp v48, v48, v48 row_ror:8 {DPP}
    s_nop 1
    v_add_f32_dpp v48, v48, v48 row_ror:4 {DPP}
    s_nop 1
    v_add_f32_dpp v48, v48, v48 row_ror:2 {DPP}
    s_nop 1
    v_add_f32_dpp v48, v48, v48 row_ror:1 {DPP}
    s_nop 1
    v_add_f32_dpp v48, v48, v48 row_bcast:15 row_mask:0xa bank_mask:0xf
    s_nop 0
    v_readlane_b32 s32, v48, 31
    v_readlane_b32 s33, v48, 63
    v_mov_b32 v50, {fh(1.0/512)}
    v_mul_f32 v48, s32, v50            ; md
    v_mul_f32 v49, s33, v50            ; E[d^2]
    v_fma_f32 v49, -v48, v48, v49      ; var
    v_add_f32 v48, s30, v48            ; mean
    v_max_f32 v49, 0, v49
    v_cvt_pk_bf16_f32 v49, v48, v49
    v_lshlrev_b32 v48, 16, v49         ; m
    v_and_b32 v50, s41, v49            ; v
    v_add_f32 v50, {fh(1e-5)}, v50
    v_pk_add_f32 v[30:31], v[{F}:{F+1}], v[48:49] op_sel_hi:[1,0] neg_lo:[0,1] neg_hi:[0,1]
    v_cvt_pk_bf16_f32 v50, v50, v50
    v_pk_add_f32 v[32:33], v[{F+2}:{F+3}], v[48:49] op_sel_hi:[1,0] neg_lo:[0,1] neg_hi:[0,1]
    v_lshlrev_b32 v50, 16, v50
    v_pk_add_f32 v[34:35], v[{F+4}:{F+5}], v[48:49] op_sel_hi:[1,0] neg_lo:[0,1] neg_hi:[0,1]
    v_sqrt_f32 v50, v50
    v_pk_add_f32 v[36:37], v[{F+6}:{F+7}], v[48:49] op_sel_hi:[1,0] neg_lo:[0,1] neg_hi:[0,1]
    v_cvt_pk_bf16_f32 v50, v50, v50
    v_cvt_pk_bf16_f32 v31, v30, v31
    v_lshlrev_b32 v50, 16, v50
    v_cvt_pk_bf16_f32 v33, v32, v33
    v_rcp_f32 v50, v50
    v_cvt_pk_bf16_f32 v35, v34, v35
    v_cvt_pk_bf16_f32 v37, v36, v37
    """)
    for i in range(4):
        a(f"v_lshlrev_b32 v{30+2*i}, 16, v{31+2*i}")
        a(f"v_and_b32 v{31+2*i}, s41, v{31+2*i}")
    for i in range(4):
        a(f"v_pk_mul_f32 {vr(30+2*i,2)}, {vr(30+2*i,2)}, v[50:51] op_sel_hi:[1,0]")
    for i in range(4):
        a(f"v_cvt_pk_bf16_f32 v{40+2*i}, v{30+2*i}, v{31+2*i}")
    a(f"""
    v_mov_b32 v52, 0
    ds_write_b128 v21, v[40:43]
    ds_write_b128 v21, v[44:47] offset:16
    s_waitcnt vmcnt(0)
    v_dot2c_f32_bf16 v52, v40, v8
    v_dot2c_f32_bf16 v52, v42, v9
    v_dot2c_f32_bf16 v52, v44, v10
    v_dot2c_f32_bf16 v52, v46, v11
    s_waitcnt lgkmcnt(0)
    s_barrier
    ds_read_b64_tr_b16 v[56:57], v22
    ds_read_b64_tr_b16 v[58:59], v22 offset:{4*RS}
    ds_read_b64_tr_b16 v[60:61], v22 offset:128
    ds_read_b64_tr_b16 v[62:63], v22 offset:{4*RS+128}
    v_add_f32_dpp v52, v52, v52 row_ror:8 {DPP}
    s_nop 1
    v_add_f32_dpp v52, v52, v52 row_ror:4 {DPP}
    s_nop 1
    v_add_f32_dpp v52, v52, v52 row_ror:2 {DPP}
    s_nop 1
    v_add_f32_dpp v52, v52, v52 row_ror:1 {DPP}
    s_waitcnt lgkmcnt(2)
    buffer_store_dwordx4 v[56:59], v23, s[20:23], s36 offen
    v_add_f32_dpp v52, v52, v52 row_bcast:15 row_mask:0xa bank_mask:0xf
    s_waitcnt lgkmcnt(0)
    buffer_store_dwordx4 v[60:63], v23, s[20:23], s37 offen
    v_add_f32_dpp v52, v52, v52 row_bcast:31 row_mask:0xc bank_mask:0xf
    s_lshl_b32 s38, s24, 3
    v_cvt_pk_bf16_f32 v52, v52, v52
    s_add_u32 s38, s38, s35            ; token
    v_readlane_b32 s33, v52, 63
    s_sub_u32 s39, 2047, s38
    s_lshl_b32 s40, s35, 2
    s_add_u32 s40, s40, {KEYL}
    s_ashr_i32 s34, s33, 31
    s_or_b32 s34, s34, 0x80000000
    s_xor_b32 s33, s33, s34
    s_and_b32 s33, s33, 0xffff0000
    s_or_b32 s33, s33, s39             ; key
    v_mov_b32 v53, s33
    v_mov_b32 v54, s40
    v_and_b32 v55, 7, v2
    v_lshlrev_b32 v55, 2, v55
    s_mov_b64 exec, 1
    ds_write_b32 v54, v53
    s_mov_b64 exec, 0xff
    s_waitcnt lgkmcnt(0)
    s_barrier
    ds_read_b32 v54, v55 offset:{KEYL}
    s_waitcnt lgkmcnt(0)
    v_cmp_lt_u32 vcc, s33, v54
    s_mov_b64 exec, -1
    s_bcnt1_i32_b64 s40, vcc
    s_cmp_ge_u32 s40, 2
    s_cbranch_scc1 K1_END
    v_mov_b32 v41, v42
    v_mov_b32 v42, v44
    v_mov_b32 v43, v46
    s_lshl_b32 s38, s38, 10
    s_add_u32 s38, s38, {hex(WS_CAND)}
    s_lshl_b32 s39, s24, 1
    s_add_u32 s39, s39, s40
    s_lshl_b32 s39, s39, 2
    s_add_u32 s39, s39, {hex(WS_KEYS)}
    v_mov_b32 v54, 0
    buffer_store_dwordx4 v[40:43], v3, s[20:23], s38 offen
    s_mov_b64 exec, 1
    buffer_store_dword v53, v54, s[20:23], s39 offen
    K1_END:
    s_endpgm
    """)
    return dict(vgpr=96, sgpr=48, lds=K1_LDS, grid=512, block=512)
```

```python
from asmlib import *
from layout import *

XB = 2048
KI = XB + 16384
KCS = 4160
DB = KI + 8 * KCS
FW = DB + 32768
FP = FW + 32768
FLAGS = FP + 1024
DUM = FLAGS + 192
K2_LDS = DUM + 512
FS_DMA0, FS_DMA1, FS_FFN, FS_TOP = 8, 9, 10, 11
SPIN_BUDGET = 200000

def gen_k2(a, name, stamps=False):
    a(f".globl {name}\n.p2align 8\n.type {name},@function\n{name}:")
    a(f"""
    s_cmp_ge_u32 s2, 256
    s_cbranch_scc1 K2_END
    s_load_dwordx2 s[12:13], s[0:1], 112
    v_lshrrev_b32 v1, 6, v0
    v_and_b32 v0, 63, v0               ; lane
    v_readfirstlane_b32 s4, v1         ; wave
    s_mov_b32 s14, {hex(WS_SIZE)}
    s_mov_b32 s15, 0x00020000
    s_and_b32 s5, s2, 7
    s_lshr_b32 s6, s2, 3
    s_lshl_b32 s7, s5, 5
    s_add_u32 s7, s7, s6               ; c
    s_mov_b32 s3, {SPIN_BUDGET}
    s_cmp_ge_u32 s4, 8
    s_cbranch_scc1 K2_FFN
    s_cmp_ge_u32 s4, 4
    s_cbranch_scc1 K2_EPI
    """)
    def spin_check(t, lab):
        ok = a.uid("K2_OK")
        a(f"""
        v_min3_u32 v{t}, v{t}, v{t+1}, v{t+2}
        v_min_u32 v{t}, v{t}, v{t+3}
        v_cmp_eq_u32 vcc, 0, v{t}
        s_cbranch_vccz {ok}
        s_sub_u32 s3, s3, 1
        s_cbranch_scc1 K2_END
        s_sleep 1
        s_branch {lab}
        {ok}:
        """)
    def flag_addr(dst, widx):
        a(f"""
        s_lshl_b32 s40, {widx}, 2
        s_add_u32 s40, s40, {FLAGS}
        v_lshlrev_b32 v{dst}, 2, v0
        v_add_u32 v{dst}, {DUM}, v{dst}
        v_writelane_b32 v{dst}, s40, 0
        """)
    vA, vF, vFl, vD, vOne = 1, 2, 6, 7, 0
    SLOT0, NSLOT, ACC0 = 8, 32, 136
    a(f"""
    s_lshr_b32 s16, s4, 1              ; ch
    s_and_b32 s17, s4, 1
    s_lshl_b32 s18, s7, 1
    s_add_u32 s18, s18, s16
    s_mul_i32 s18, s18, {KG_STRIDE}
    s_mul_i32 s19, s17, {KG_H+4}
    s_add_u32 s18, s18, s19
    s_add_u32 s18, s18, {hex(WS_KG)}
    s_add_u32 s19, s18, 4
    s_lshl_b32 s20, s16, 2
    s_sub_u32 s20, s20, s17
    s_add_u32 s20, s20, 1
    s_mul_i32 s21, s20, {KCS}
    s_add_u32 s21, s21, {KI}
    s_add_u32 s20, s21, {2*KCS}
    s_lshl_b32 s22, s7, 14
    s_lshl_b32 s23, s4, 10
    s_add_u32 s22, s22, s23
    s_add_u32 s23, s23, {XB}
    v_lshlrev_b32 v8, 4, v0
    s_waitcnt lgkmcnt(0)
    """)
    for r in range(4):
        q = 3 - r
        a(f"""
        s_mov_b32 m0, s23
        s_add_u32 s23, s23, 4096
        buffer_load_dwordx4 v8, s[12:15], s22 offen lds
        s_mov_b32 m0, s20
        s_add_u32 s22, s22, 4096
        buffer_load_dwordx4 v8, s[12:15], s18 offen offset:{1024*q} lds
        s_mov_b32 m0, s21
        s_nop 0
        buffer_load_dwordx4 v8, s[12:15], s19 offen offset:{1024*q} lds
        """)
    a(f"""
    v_and_b32 v9, 15, v0               ; i / n
    v_lshrrev_b32 v10, 4, v0           ; g
    v_and_b32 v11, 3, v9               ; c
    v_lshrrev_b32 v12, 2, v9           ; ih
    s_mul_i32 s24, s16, {4*KCS}
    s_lshl_b32 s25, s17, 8
    s_sub_u32 s24, s24, s25
    s_add_u32 s24, s24, {KI + 2*2028 - 64*59}
    v_mul_u32_u24 v{vA}, {KCS}, v11
    v_lshl_add_u32 v{vA}, v10, 4, v{vA}
    v_lshlrev_b32 v12, 3, v12
    v_sub_u32 v{vA}, v{vA}, v12
    v_add_u32 v{vA}, s24, v{vA}
    s_lshl_b32 s25, s17, 4
    s_sub_u32 s25, 30, s25
    v_lshl_add_u32 v11, v9, 1, v10
    v_add_u32 v11, s25, v11            ; t0 + 32
    """)
    for tp in range(4):
        a(f"""
        v_subrev_u32 v12, {4*tp}, v11
        v_lshrrev_b32 v13, 2, v12
        v_add_u32 v13, s16, v13
        v_and_b32 v13, 3, v13
        v_lshlrev_b32 v13, 4, v13
        v_lshl_add_u32 v{vF+tp}, v12, 6, v13
        """)
    flag_addr(vFl, "s4")
    a(f"""
    s_lshl_b32 s24, s4, 10
    s_add_u32 s24, s24, {DB}
    v_add_u32 v{vD}, s24, v8
    v_mov_b32 v{vOne}, 1
    v_mov_b32 v132, {FLAGS}
    s_barrier
    s_waitcnt vmcnt(9)
    ds_write_b32 v{vFl}, v{vOne} offset:{16*FS_DMA0}
    K2_M_SP0:
    ds_read_b128 v[128:131], v132 offset:{16*FS_DMA0}
    s_waitcnt lgkmcnt(0)
    """)
    spin_check(128, "K2_M_SP0")
    stages = [
        ([0], [(0,0)]),
        ([1], [(1,0),(0,1),(1,1)]),
        ([2], [(2,0),(0,2),(2,1),(1,2),(2,2)]),
        ([3,4], [(3,0),(0,3),(3,1),(1,3),(3,2),(2,3),(3,3),(4,0),(0,4),(4,1),(1,4),(4,2),(2,4),(4,3),(3,4)]),
        ([5], [(5,0),(0,5),(5,1),(1,5),(5,2),(2,5)]),
        ([6], [(6,0),(0,6),(6,1),(1,6)]),
        ([7], [(7,0),(0,7)]),
    ]
    mf = []
    for blks, pairs in stages:
        for tp in range(4):
            for (s_, j_) in pairs:
                mf.append((s_, j_, tp))
    first, last = {}, {}
    for idx, (s_, j_, tp) in enumerate(mf):
        for fr in (("A", s_, tp), ("F", j_, tp)):
            first.setdefault(fr, idx)
            last[fr] = idx
    order = sorted(first, key=lambda fr: first[fr])
    lastacc = {}
    for idx, (s_, j_, tp) in enumerate(mf):
        lastacc[s_ + j_] = idx
    free = list(range(NSLOT - 2))
    slot = {}
    opno = [0]
    done = [0]
    ready_at = {}
    qi = [0]
    gate_open = [False]
    def lds_room(n):
        return opno[0] + n - done[0] <= 15
    def issue(fr):
        kind, b, tp = fr
        sl = free.pop(0)
        slot[fr] = sl
        r = SLOT0 + 4 * sl
        if kind == "A":
            off = 64 * (59 - 8 * b - tp)
            a(f"ds_read_b64 {vr(r,2)}, v{vA} offset:{off}")
            a(f"ds_read_b64 {vr(r+2,2)}, v{vA} offset:{off+8}")
            opno[0] += 2
        else:
            a(f"ds_read_b128 {vr(r,4)}, v{vF+tp} offset:{2048*b}")
            opno[0] += 1
        ready_at[fr] = opno[0]
    def prefetch(maxn):
        n = 0
        while qi[0] < len(order) and n < maxn:
            fr = order[qi[0]]
            if fr[1] >= 2 and not gate_open[0]:
                break
            if not free or not lds_room(2 if fr[0] == "A" else 1):
                break
            issue(fr); qi[0] += 1; n += 1
    def wait_for(op):
        if op > done[0]:
            a(f"s_waitcnt lgkmcnt({opno[0]-op})")
            done[0] = op
    started = set()
    pending_w = []
    def flush_writes(force=False):
        for pw in list(pending_w):
            if pw[1] <= 0 or force:
                if force and pw[1] > 0:
                    a(f"s_nop {pw[1]-1}")
                if not lds_room(2):
                    wait_for(opno[0] - 13)
                nb = pw[0]
                a(f"ds_write_b128 v{vD}, {vr(ACC0+4*nb,4)} offset:{4096*nb}")
                a(f"ds_write_b32 v{vFl}, v{vOne} offset:{16*nb}")
                opno[0] += 2
                pending_w.remove(pw)
    prefetch(100)
    for idx, (s_, j_, tp) in enumerate(mf):
        fa, ff = ("A", s_, tp), ("F", j_, tp)
        if s_ == 2 and j_ == 0 and tp == 0:
            flush_writes(force=True)
            a(f"""
            s_waitcnt vmcnt(0)
            ds_write_b32 v{vFl}, v{vOne} offset:{16*FS_DMA1}
            K2_M_SP1:
            ds_read_b128 v[128:131], v132 offset:{16*FS_DMA1}
            s_waitcnt lgkmcnt(0)
            """)
            spin_check(128, "K2_M_SP1")
            done[0] = opno[0]
            gate_open[0] = True
            free.extend([30, 31])
            prefetch(100)
        while fa not in slot or ff not in slot:
            if not lds_room(2):
                wait_for(opno[0] - 12)
            n0 = qi[0]
            prefetch(1)
            assert qi[0] > n0, "scheduler stuck"
        wait_for(max(ready_at[fa], ready_at[ff]))
        nb = s_ + j_
        acc = vr(ACC0 + 4 * nb, 4)
        c = acc if nb in started else "0"
        started.add(nb)
        a(f"v_mfma_f32_16x16x32_bf16 {acc}, {vr(SLOT0+4*slot[fa],4)}, {vr(SLOT0+4*slot[ff],4)}, {c}")
        for pw in pending_w:
            pw[1] -= 1
        for fr in (fa, ff):
            if last[fr] == idx:
                free.append(slot[fr])
        if lastacc[nb] == idx:
            pending_w.append([nb, 8])
        flush_writes()
        prefetch(1)
    flush_writes(force=True)
    a("s_endpgm")

    a("K2_EPI:")
    vX, vO, vDr, vFs = 1, 5, 6, 7
    a(f"""
    s_load_dwordx2 s[16:17], s[0:1], 96
    s_load_dwordx2 s[20:21], s[0:1], 48
    s_sub_u32 s4, s4, 4                ; e
    s_mov_b32 s18, 0x200000
    s_mov_b32 s19, 0x00020000
    s_lshl_b32 s24, s4, 6
    v_add_u32 v8, s24, v0              ; idx 0..255
    v_lshlrev_b32 v9, 4, v8            ; idx*16
    v_subrev_u32 v10, 128, v8
    v_lshrrev_b32 v11, 2, v10
    v_mul_u32_u24 v11, {KCS}, v11
    v_and_b32 v12, 3, v10
    v_lshl_add_u32 v11, v12, 4, v11
    v_add_u32 v11, {KI+4096}, v11
    v_subrev_u32 v10, 160, v8
    v_min_u32 v10, 24, v10
    v_lshlrev_b32 v10, 4, v10
    v_add_u32 v10, {FLAGS}, v10
    v_cmp_gt_u32 vcc, 160, v8
    v_mov_b32 v12, 0
    v_mov_b32 v13, 0
    v_cndmask_b32 v10, v10, v11, vcc
    v_cmp_gt_u32 vcc, 128, v8
    v_mov_b32 v14, 0
    v_mov_b32 v15, 0
    v_cndmask_b32 v10, v10, v9, vcc
    ds_write_b128 v10, v[12:15]
    s_lshl_b32 s25, s7, 2              ; c*4
    s_waitcnt lgkmcnt(0)
    s_barrier
    s_load_dword s22, s[20:21], s25
    v_and_b32 v9, 15, v0               ; n
    v_lshrrev_b32 v10, 4, v0           ; g
    v_lshrrev_b32 v11, 1, v10
    v_lshl_add_u32 v11, v9, 1, v11     ; t_local
    v_lshlrev_b32 v11, 6, v11
    v_and_b32 v12, 1, v10
    v_lshl_add_u32 v11, v12, 3, v11
    s_lshl_b32 s24, s4, 11
    s_add_u32 s24, s24, {XB}
    v_add_u32 v11, s24, v11
    v_lshrrev_b32 v12, 1, v9           ; rot
    """)
    for k in range(4):
        a(f"""
        v_add_u32 v13, {k}, v12
        v_and_b32 v13, 3, v13
        v_lshl_add_u32 v{vX+k}, v13, 4, v11
        """)
    a(f"""
    v_lshlrev_b32 v13, 2, v9
    v_add_u32 v13, v13, v10            ; 4n+g
    v_lshlrev_b32 v{vO}, 12, v13       ; (16n+4g)*1024
    v_lshlrev_b32 v80, 2, v13
    s_lshl_b32 s24, s4, 12
    s_add_u32 s24, s24, {DB}
    v_lshlrev_b32 v{vDr}, 4, v0
    v_add_u32 v{vDr}, s24, v{vDr}
    s_lshl_b32 s24, s4, 4
    s_add_u32 s24, s24, {FLAGS}
    v_mov_b32 v{vFs}, s24
    s_cmp_lt_u32 s4, 2
    s_cselect_b32 s24, 0, 16
    s_add_u32 s24, s24, {FLAGS+16*FS_DMA0}
    v_mov_b32 v81, s24
    v_mov_b32 v82, {FLAGS+16*FS_TOP}
    s_lshl_b32 s26, s4, 18
    s_add_u32 s26, s26, s25
    s_mov_b32 s27, s4                  ; nb
    s_mov_b32 s41, 0xffff0000
    s_mov_b32 s42, {fh(-LOG2E)}
    s_waitcnt lgkmcnt(0)
    s_lshl_b32 s28, s22, 16            ; D ch0
    s_and_b32 s30, s22, s41            ; D ch1
    K2_E_LOOP:
    ds_read_b128 v[8:11], v81
    ds_read_b64 v[12:13], v{vX}
    ds_read_b64 v[14:15], v{vX+1}
    ds_read_b64 v[16:17], v{vX+2}
    ds_read_b64 v[18:19], v{vX+3}
    s_waitcnt lgkmcnt(0)
    """)
    spin_check(8, "K2_E_LOOP")
    XN, XX, G, T = 20, 28, 36, 44
    for ch in range(2):
        for h in range(2):
            a(f"v_lshlrev_b32 v{XN+4*ch+2*h}, 16, v{12+2*ch+h}")
            a(f"v_and_b32 v{XN+4*ch+2*h+1}, s41, v{12+2*ch+h}")
    for i in range(4):
        a(f"v_pk_mul_f32 {vr(T+2*i,2)}, {vr(XN+2*i,2)}, s[42:43] op_sel_hi:[1,0]")
    for i in range(8):
        a(f"v_exp_f32 v{T+i}, v{T+i}")
        ch, h, lo = i // 4, (i // 2) % 2, i % 2
        if lo == 0:
            a(f"v_lshlrev_b32 v{XX+i}, 16, v{16+2*ch+h}")
        else:
            a(f"v_and_b32 v{XX+i}, s41, v{16+2*ch+h}")
    for i in range(4):
        a(f"v_pk_add_f32 {vr(T+2*i,2)}, {vr(T+2*i,2)}, 1.0 op_sel_hi:[1,0]")
    for i in range(8):
        a(f"v_rcp_f32 v{T+i}, v{T+i}")
    a("s_nop 0")
    for i in range(4):
        a(f"v_pk_mul_f32 {vr(G+2*i,2)}, {vr(T+2*i,2)}, {vr(XN+2*i,2)}")
    for i in range(4):
        sp = "s[28:29]" if i < 2 else "s[30:31]"
        a(f"v_pk_mul_f32 {vr(T+2*i,2)}, {vr(XN+2*i,2)}, {sp} op_sel_hi:[1,0]")
    for i in range(4):
        a(f"v_pk_fma_f32 {vr(XX+2*i,2)}, {vr(T+2*i,2)}, {vr(G+2*i,2)}, {vr(XX+2*i,2)}")
    a(f"""
    K2_E_SPT:
    ds_read_b128 v[8:11], v82
    s_waitcnt lgkmcnt(0)
    v_readfirstlane_b32 s32, v8
    v_readfirstlane_b32 s33, v9
    """)
    spin_check(8, "K2_E_SPT")
    a(f"""
    s_and_b32 s32, s32, 0x7ff
    s_and_b32 s33, s33, 0x7ff
    s_lshl_b32 s34, s27, 8
    s_sub_u32 s34, 2047, s34
    s_sub_u32 s32, s34, s32
    s_sub_u32 s33, s34, s33
    v_mov_b32 v76, v{vO}
    v_add_u32 v77, 1024, v{vO}
    v_add_u32 v78, 2048, v{vO}
    v_add_u32 v79, 3072, v{vO}
    s_min_u32 s34, s32, s33
    s_cmp_ge_u32 s34, 256
    s_cbranch_scc1 K2_E_SPD
    v_bfrev_b32 v83, 1
    """)
    for r in range(4):
        a(f"""
        v_add_u32 v84, {r}, v80
        v_cmp_eq_u32 vcc, s32, v84
        v_cmp_eq_u32 s[36:37], s33, v84
        s_or_b64 vcc, vcc, s[36:37]
        v_cndmask_b32 v{76+r}, v{76+r}, v83, vcc
        """)
    Y = 56
    a(f"""
    K2_E_SPD:
    ds_read_b128 v[8:11], v{vFs}
    ds_read_b128 {vr(Y,4)}, v{vDr}
    ds_read_b128 {vr(Y+4,4)}, v{vDr} offset:1024
    ds_read_b128 {vr(Y+8,4)}, v{vDr} offset:2048
    ds_read_b128 {vr(Y+12,4)}, v{vDr} offset:3072
    s_waitcnt lgkmcnt(0)
    """)
    spin_check(8, "K2_E_SPD")
    for ch in range(2):
        for h in range(2):
            a(f"v_pk_add_f32 {vr(Y+8*ch+2*h,2)}, {vr(Y+8*ch+2*h,2)}, {vr(Y+8*ch+4+2*h,2)}")
    for h in range(2):
        for ch in range(2):
            a(f"v_pk_fma_f32 {vr(XX+4*ch+2*h,2)}, {vr(Y+8*ch+2*h,2)}, {vr(G+4*ch+2*h,2)}, {vr(XX+4*ch+2*h,2)}")
    for r in range(4):
        a(f"v_cvt_pk_bf16_f32 v{72+r}, v{XX+r}, v{XX+4+r}")
        a(f"buffer_store_dword v{72+r}, v{76+r}, s[16:19], s26 offen")
    a(f"""
    s_cmp_ge_u32 s27, 4
    s_cbranch_scc1 K2_END
    s_add_u32 s27, s27, 4
    s_add_u32 s26, s26, 0x100000
    v_add_u32 v{vX}, 8192, v{vX}
    v_add_u32 v{vX+1}, 8192, v{vX+1}
    v_add_u32 v{vX+2}, 8192, v{vX+2}
    v_add_u32 v{vX+3}, 8192, v{vX+3}
    v_add_u32 v{vDr}, 16384, v{vDr}
    v_add_u32 v{vFs}, 64, v{vFs}
    v_mov_b32 v81, {FLAGS+16*FS_DMA1}
    s_branch K2_E_LOOP
    """)

    a("K2_FFN:")
    a(f"""
    s_sub_u32 s4, s4, 8                ; f
    s_mul_i32 s8, s5, 11
    s_add_u32 s8, s8, s6               ; slice
    s_cmp_lt_u32 s6, 11
    s_cselect_b32 s8, s8, 1000
    s_cmp_lt_u32 s8, {NSLICE}
    s_cselect_b32 s9, 1, 0
    s_cbranch_scc1 K2_F_GO
    s_cmp_lg_u32 s4, 0
    s_cbranch_scc1 K2_END
    K2_F_GO:
    s_load_dwordx2 s[16:17], s[0:1], 72
    s_load_dwordx2 s[20:21], s[0:1], 80
    s_load_dwordx2 s[24:25], s[0:1], 88
    s_load_dwordx2 s[28:29], s[0:1], 96
    s_load_dwordx2 s[32:33], s[0:1], 48
    s_mov_b32 s18, {512*2752}
    s_mov_b32 s19, 0x00020000
    s_mov_b32 s22, {512*2752}
    s_mov_b32 s23, 0x00020000
    s_mov_b32 s26, {1376*1024}
    s_mov_b32 s27, 0x00020000
    s_mov_b32 s30, 0x200000
    s_mov_b32 s31, 0x00020000
    s_mov_b32 s34, {hex(WS_KEYS)}
    v_lshlrev_b32 v1, 5, v0
    s_waitcnt lgkmcnt(0)
    buffer_load_dwordx4 v[8:11], v1, s[12:15], s34 offen
    buffer_load_dwordx4 v[12:15], v1, s[12:15], s34 offen offset:16
    s_lshl_b32 s35, s7, 2
    s_load_dword s36, s[32:33], s35
    s_cmp_eq_u32 s9, 0
    s_cbranch_scc1 K2_F_NOLOAD
    s_lshl_b32 s37, s4, 7
    v_lshrrev_b32 v2, 1, v0
    v_add_u32 v2, s37, v2
    v_mul_u32_u24 v2, 2752, v2
    v_and_b32 v3, 1, v0
    v_lshl_add_u32 v2, v3, 4, v2
    s_lshl_b32 s38, s8, 5              ; slice*32
    s_lshl_b32 s39, s4, 13
    s_add_u32 s39, s39, {FW}
    """)
    for i in range(4):
        a(f"""
        s_add_u32 s40, s39, {1024*i}
        s_mov_b32 m0, s40
        s_add_u32 s40, s40, 4096
        buffer_load_dwordx4 v2, s[16:19], s38 offen lds
        s_mov_b32 m0, s40
        s_nop 0
        buffer_load_dwordx4 v2, s[20:23], s38 offen lds
        s_add_u32 s38, s38, {32*2752}
        """)
    WD = 32
    a(f"""
    s_lshl_b32 s37, s4, 8
    v_lshlrev_b32 v3, 2, v0
    v_add_u32 v3, s37, v3
    s_lshl_b32 s38, s8, 14
    """)
    for i in range(16):
        a(f"buffer_load_dword v{WD+i}, v3, s[24:27], s38 offen offset:{1024*(i%4)}")
        if i % 4 == 3 and i < 15:
            a("s_add_u32 s38, s38, 4096")
    a(f"""
    s_barrier
    s_waitcnt vmcnt(24)
    s_branch K2_F_TOP
    K2_F_NOLOAD:
    s_barrier
    s_waitcnt vmcnt(0)
    K2_F_TOP:
    """)
    def merge(a0, a1, b0, b1):
        a(f"v_max_u32 v{a1}, v{a1}, v{b1}")
        a(f"v_med3_u32 v{a1}, v{a0}, v{b0}, v{a1}")
        a(f"v_max_u32 v{a0}, v{a0}, v{b0}")
    merge(8, 9, 10, 11); merge(12, 13, 14, 15); merge(8, 9, 12, 13)
    for sh in (8, 4, 2, 1):
        a(f"""
        s_nop 1
        v_mov_b32_dpp v10, v8 row_ror:{sh} {DPP}
        v_max_u32_dpp v9, v9, v9 row_ror:{sh} {DPP}
        v_med3_u32 v9, v8, v10, v9
        v_max_u32 v8, v8, v10
        """)
    a("s_nop 0")
    for k in range(4):
        a(f"v_readlane_b32 s{44+2*k}, v8, {16*k}")
        a(f"v_readlane_b32 s{45+2*k}, v9, {16*k}")
    def smerge(a0, a1, b0, b1):
        a(f"""
        s_max_u32 s{a1}, s{a1}, s{b1}
        s_min_u32 s{b1}, s{a0}, s{b0}
        s_max_u32 s{a1}, s{a1}, s{b1}
        s_max_u32 s{a0}, s{a0}, s{b0}
        """)
    smerge(44, 45, 46, 47); smerge(48, 49, 50, 51); smerge(44, 45, 48, 49)
    a(f"""
    s_and_b32 s46, s44, 0x7ff
    s_and_b32 s47, s45, 0x7ff
    s_sub_u32 s46, 2047, s46           ; tokA
    s_sub_u32 s47, 2047, s47           ; tokB
    s_cmp_eq_u32 s9, 0
    s_cbranch_scc1 K2_F_BC
    v_and_b32 v4, 4, v0
    v_cmp_eq_u32 vcc, 0, v4
    v_mov_b32 v4, s47
    v_mov_b32 v5, s46
    v_cndmask_b32 v4, v4, v5, vcc
    v_lshlrev_b32 v4, 10, v4
    v_and_b32 v5, 48, v0               ; g*16 bytes
    v_add_u32 v4, v4, v5
    s_lshl_b32 s37, s4, 8
    s_add_u32 s37, s37, {hex(WS_CAND)}
    buffer_load_dwordx4 v[16:19], v4, s[12:15], s37 offen
    buffer_load_dwordx4 v[20:23], v4, s[12:15], s37 offen offset:64
    buffer_load_dwordx4 v[24:27], v4, s[12:15], s37 offen offset:128
    buffer_load_dwordx4 v[28:31], v4, s[12:15], s37 offen offset:192
    s_cmp_lg_u32 s4, 0
    s_cbranch_scc1 K2_F_NOBC
    K2_F_BC:
    s_or_b32 s48, s44, 0x8000
    s_or_b32 s49, s45, 0x8000
    v_mov_b32 v8, s48
    v_mov_b32 v9, s49
    v_mov_b32 v10, 1
    v_mov_b32 v11, 1
    v_mov_b32 v12, {FLAGS+16*FS_TOP}
    s_mov_b64 exec, 1
    ds_write_b128 v12, v[8:11]
    s_mov_b64 exec, -1
    s_cmp_eq_u32 s9, 0
    s_cbranch_scc1 K2_F_FIX
    K2_F_NOBC:
    v_lshrrev_b32 v5, 4, v0            ; g
    v_bfe_u32 v6, v0, 2, 2             ; r
    v_lshl_add_u32 v6, v5, 3, v6
    v_lshlrev_b32 v6, 5, v6
    v_and_b32 v7, 3, v0
    v_lshl_add_u32 v6, v7, 3, v6
    v_add_u32 v6, s39, v6
    s_waitcnt vmcnt(20)
    """)
    BW = 64
    for m in range(2):
        for ks in range(4):
            r = BW + 16 * m + 4 * ks
            a(f"ds_read_b64_tr_b16 {vr(r,2)}, v6 offset:{4096*m+1024*ks}")
            a(f"ds_read_b64_tr_b16 {vr(r+2,2)}, v6 offset:{4096*m+1024*ks+128}")
        if m == 0:
            a("s_waitcnt lgkmcnt(4)")
    flag_addr(1, "s4")
    a(f"""
    s_mov_b32 s40, 0x05040100
    s_mov_b32 s41, 0x07060302
    v_and_b32 v7, 31, v0
    v_lshlrev_b32 v7, 5, v7
    v_add_u32 v7, {FP}, v7
    v_lshrrev_b32 v2, 5, v0
    v_lshl_add_u32 v2, v2, 4, v7
    s_lshl_b32 s37, s4, 2
    v_add_u32 v2, s37, v2
    v_mov_b32 v12, {FLAGS+16*FS_FFN}
    v_mov_b32 v13, 1
    v_cmp_gt_u32 vcc, 32, v0
    s_waitcnt vmcnt(4)
    """)
    for p in range(8):
        a(f"v_perm_b32 v{48+2*p}, v{WD+2*p+1}, v{WD+2*p}, s40")
        a(f"v_perm_b32 v{49+2*p}, v{WD+2*p+1}, v{WD+2*p}, s41")
    a(f"""
    v_mov_b32 v32, 0
    v_mov_b32 v33, 0
    v_mov_b32 v34, 0
    v_mov_b32 v35, 0
    s_lshl_b32 s37, s8, 12
    s_add_u32 s37, s37, {hex(WS_PART)}
    v_lshlrev_b32 v3, 2, v3            ; (64f+lane)*16
    s_waitcnt lgkmcnt(0)
    """)
    for ks in range(4):
        a(f"s_waitcnt vmcnt({3-ks})")
        for m in range(2):
            acc = vr(96 + 4 * m, 4)
            a(f"v_mfma_f32_16x16x32_bf16 {acc}, {vr(16+4*ks,4)}, {vr(BW+16*m+4*ks,4)}, {acc if ks else 0}")
    a(f"""
    s_nop 7
    v_cndmask_b32 v14, v100, v96, vcc
    ds_write_b32 v2, v14
    ds_write_b32 v1, v13 offset:{16*FS_FFN}
    K2_F_SP:
    ds_read_b128 v[8:11], v12
    ds_read_b128 v[16:19], v7
    ds_read_b128 v[20:23], v7 offset:16
    s_waitcnt lgkmcnt(0)
    """)
    spin_check(8, "K2_F_SP")
    a(f"""
    v_add_f32 v16, v16, v17
    v_add_f32 v18, v18, v19
    v_add_f32 v20, v20, v21
    v_add_f32 v22, v22, v23
    v_add_f32 v16, v16, v18
    v_add_f32 v20, v20, v22
    v_cvt_pk_bf16_f32 v17, v16, v20
    v_lshlrev_b32 v16, 16, v17         ; gate
    v_mul_f32 v18, {fh(-LOG2E)}, v16
    v_exp_f32 v18, v18
    v_and_b32 v20, 0xffff0000, v17     ; up
    v_add_f32 v18, 1.0, v18
    v_rcp_f32 v18, v18
    s_nop 0
    v_mul_f32 v16, v16, v18
    v_cvt_pk_bf16_f32 v16, v16, v16
    v_lshlrev_b32 v16, 16, v16
    v_mul_f32 v16, v16, v20
    s_nop 1
    v_mov_b32_dpp v17, v16 quad_perm:[1,0,3,2] {DPP}
    v_cvt_pk_bf16_f32 v16, v16, v17
    s_nop 0
    """)
    for i in range(16):
        a(f"v_readlane_b32 s{52+i}, v16, {2*i}")
    for p in range(8):
        for tok in range(2):
            for ch in range(2):
                a(f"v_dot2c_f32_bf16 v{32+2*tok+ch}, s{52+8*tok+p}, v{48+2*p+ch}")
    a(f"""
    s_nop 2
    v_min_u32 v32, -2, v32
    v_min_u32 v33, -2, v33
    v_min_u32 v34, -2, v34
    v_min_u32 v35, -2, v35
    buffer_store_dwordx4 v[32:35], v3, s[12:15], s37 offen sc1
    s_cmp_lg_u32 s4, 0
    s_cbranch_scc1 K2_END
    K2_F_FIX:
    s_add_u32 s68, s12, {hex(WS_PART)}
    s_addc_u32 s69, s13, 0
    s_mov_b32 s70, {NSLICE*4096}
    s_mov_b32 s71, 0x00020000
    v_lshlrev_b32 v1, 12, v0
    v_add_u32 v2, 0x40000, v1
    s_lshl_b32 s37, s7, 4
    v_cmp_gt_u32 vcc, 32, v0
    v_mov_b32 v4, s47
    v_mov_b32 v5, s46
    v_cndmask_b32 v4, v4, v5, vcc      ; token l
    v_mov_b32 v6, s45
    v_mov_b32 v5, s44
    v_cndmask_b32 v6, v6, v5, vcc      ; key
    v_bfe_u32 v5, v0, 4, 1             ; ch
    v_lshrrev_b32 v7, 3, v4            ; tile
    v_lshrrev_b32 v8, 5, v4
    v_add_u32 v8, v8, v5               ; ch + t>>2
    v_add_u32 v9, 2, v8
    v_and_b32 v8, 3, v8
    v_and_b32 v9, 3, v9
    v_and_b32 v10, 7, v4
    v_lshlrev_b32 v10, 1, v10
    v_lshl_add_u32 v10, v7, 6, v10
    v_add_u32 v10, {XB}, v10
    v_lshl_add_u32 v40, v8, 4, v10
    v_lshl_add_u32 v41, v9, 4, v10     ; x addr
    v_lshrrev_b32 v7, 8, v4            ; nb
    v_lshlrev_b32 v42, 4, v7
    v_add_u32 v42, {FLAGS}, v42
    v_lshlrev_b32 v43, 12, v7
    v_lshl_add_u32 v43, v5, 11, v43
    v_bfe_u32 v8, v4, 2, 2
    v_lshl_add_u32 v43, v8, 8, v43
    v_bfe_u32 v8, v4, 4, 4
    v_lshl_add_u32 v43, v8, 4, v43
    v_and_b32 v8, 3, v4
    v_lshl_add_u32 v43, v8, 2, v43
    v_add_u32 v43, {DB}, v43           ; y addr
    v_lshlrev_b32 v44, 10, v4
    v_lshl_add_u32 v44, v5, 1, v44
    ; r_sel
    v_ashrrev_i32 v8, 31, v6
    v_not_b32 v8, v8
    v_or_b32 v8, 0x80000000, v8
    v_xor_b32 v6, v6, v8
    v_and_b32 v6, 0xffff0000, v6
    v_mul_f32 v6, {fh(-LOG2E)}, v6
    v_exp_f32 v6, v6
    v_lshlrev_b32 v8, 4, v5
    v_add_f32 v6, 1.0, v6
    v_rcp_f32 v6, v6
    s_waitcnt lgkmcnt(0)
    v_lshrrev_b32 v45, v8, s36
    v_cvt_pk_bf16_f32 v6, v6, v6
    v_lshlrev_b32 v45, 16, v45         ; D
    v_lshlrev_b32 v46, 16, v6          ; r_sel
    K2_F_POLL:
    buffer_load_dwordx4 v[8:11], v1, s[68:71], s37 offen sc1
    buffer_load_dwordx4 v[12:15], v2, s[68:71], s37 offen sc1
    s_waitcnt vmcnt(0)
    v_max3_u32 v16, v8, v9, v10
    v_max3_u32 v17, v11, v12, v13
    v_max3_u32 v16, v16, v14, v15
    v_max_u32 v16, v16, v17
    v_cmp_eq_u32 vcc, -1, v16
    s_cbranch_vccz K2_F_GOT
    s_sub_u32 s3, s3, 50
    s_cbranch_scc1 K2_END
    s_sleep 2
    s_branch K2_F_POLL
    K2_F_GOT:
    v_pk_add_f32 v[8:9], v[8:9], v[12:13]
    v_pk_add_f32 v[10:11], v[10:11], v[14:15]
    K2_F_SPY:
    ds_read_b128 v[20:23], v42
    ds_read_u16 v24, v40
    ds_read_u16 v25, v41
    ds_read_b32 v26, v43
    ds_read_b32 v27, v43 offset:1024
    s_waitcnt lgkmcnt(0)
    """)
    spin_check(20, "K2_F_SPY")
    a(f"""
    v_permlane32_swap_b32 v8, v10
    v_permlane32_swap_b32 v9, v11
    v_lshlrev_b32 v24, 16, v24
    v_add_f32 v8, v8, v10
    v_add_f32 v9, v9, v11
    v_lshlrev_b32 v25, 16, v25
    v_add_f32 v26, v26, v27
    v_permlane16_swap_b32 v8, v9
    v_fma_f32 v26, v24, v45, v26       ; s
    v_add_f32 v8, v8, v9
    s_nop 1
    v_add_f32_dpp v8, v8, v8 row_ror:8 {DPP}
    s_nop 1
    v_add_f32_dpp v8, v8, v8 row_ror:4 {DPP}
    s_nop 1
    v_add_f32_dpp v8, v8, v8 row_ror:2 {DPP}
    s_nop 1
    v_add_f32_dpp v8, v8, v8 row_ror:1 {DPP}
    v_cvt_pk_bf16_f32 v8, v8, v8
    v_lshlrev_b32 v8, 16, v8
    v_mul_f32 v8, v8, v46
    v_cvt_pk_bf16_f32 v8, v8, v8
    v_lshlrev_b32 v8, 16, v8
    v_add_f32 v8, v8, v24
    v_cvt_pk_bf16_f32 v8, v8, v8
    v_lshlrev_b32 v8, 16, v8
    v_mul_f32 v9, {fh(-LOG2E)}, v8
    v_exp_f32 v9, v9
    s_mov_b32 s40, 0x00010001
    v_add_f32 v9, 1.0, v9
    v_rcp_f32 v9, v9
    s_mov_b32 s41, 0x00010001
    v_mul_f32 v8, v8, v9
    v_fma_f32 v8, v8, v26, v25
    v_cvt_pk_bf16_f32 v8, v8, v8
    s_mov_b64 exec, s[40:41]
    buffer_store_short v8, v44, s[28:31], s35 offen
    K2_END:
    s_endpgm
    """)
    return dict(vgpr=168, sgpr=80, lds=K2_LDS, grid=256, block=768)
```

```python
WS_XT   = 0
WS_KG   = 4 << 20
KG_STRIDE = 8320
KG_H    = 4160
WS_KEYS = 9 << 20
WS_CAND = 10 << 20
WS_PART = 12 << 20
NSLICE  = 86
WS_STAMP = 14 << 20
WS_SIZE = 16 << 20
LOG2E = 1.4426950408889634
INV2PI = 0.15915494309189535
```

```python
import sys
sys.path.insert(0, "gen")
from asmlib import *
from k1 import gen_k1
from k2 import gen_k2
def build(out, extra_empty=0):
    a = Asm()
    a('.amdgcn_target "amdgcn-amd-amdhsa--gfx950"\n.text')
    ks = []
    ks.append(("k1_kernel", gen_k1(a, "k1_kernel")))
    ks.append(("k2_kernel", gen_k2(a, "k2_kernel")))
    launches = list(ks)
    if extra_empty:
        a(".globl ke_kernel\n.p2align 8\n.type ke_kernel,@function\nke_kernel:\ns_endpgm")
        e = ("ke_kernel", dict(vgpr=8, sgpr=8, lds=0, grid=256, block=256))
        ks.append(e)
        launches += [e] * extra_empty
    hdr = open("recurrent_scan__ssm_conv_s4d__moe_arch_mod__prompt.s.ref").read().split("; Override")[0]
    for n, k in launches:
        hdr += f"; @launch kernel={n} grid=({k['grid']},1,1) block=({k['block']},1,1) lds={k['lds']}\n"
    txt = hdr + a.text() + '.section .rodata,"a"\n'
    for n, k in ks:
        txt += kernel_desc(n, k["vgpr"], k["sgpr"])
    open(out, "w").write(txt)
if __name__ == "__main__":
    build(sys.argv[1], int(sys.argv[2]) if len(sys.argv) > 2 else 0)
```

```python
class Asm:
    def __init__(self):
        self.lines = []
        self._uid = 0
    def __call__(self, s):
        for ln in s.strip("\n").split("\n"):
            ln = ln.strip()
            if not ln:
                continue
            if ln.endswith(":") or ln.startswith("."):
                self.lines.append(ln)
            else:
                self.lines.append("    " + ln)
    def label(self, name):
        self.lines.append(name + ":")
    def uid(self, p="L"):
        self._uid += 1
        return f"{p}_{self._uid}"
    stamps = False
    def stamp(self, i):
        if self.stamps:
            self(f"s_memrealtime s[{80+2*i}:{81+2*i}]")
    def stamp_init(self):
        if self.stamps:
            self("s_memrealtime s[80:81]")
            self("v_readfirstlane_b32 s79, v0")
            for i in range(1, 8):
                self(f"s_mov_b32 s{80+2*i}, 0")
    def end(self, label):
        if self.stamps:
            self(f"s_branch {label}")
        else:
            self("s_endpgm")
    def stamp_dump(self, base, nwaves, grid):
        if self.stamps:
            self(f"""
            s_cmp_ge_u32 s2, {grid}
            s_cbranch_scc1 {self.uid('SD')}
            s_waitcnt vmcnt(0) lgkmcnt(0)
            s_memrealtime s[94:95]
            s_load_dwordx2 s[96:97], s[0:1], 112
            s_mov_b32 s98, 0x1000000
            s_mov_b32 s99, 0x00020000
            s_lshr_b32 s79, s79, 6
            s_mul_i32 s78, s2, {nwaves}
            s_add_u32 s78, s78, s79
            s_lshl_b32 s78, s78, 5
            s_add_u32 s78, s78, {hex(base)}
            s_mov_b64 exec, 1
            s_waitcnt lgkmcnt(0)
            v_mov_b32 v0, 0
            v_mov_b32 v4, s80
            v_mov_b32 v5, s82
            v_mov_b32 v6, s84
            v_mov_b32 v7, s86
            v_mov_b32 v8, s88
            v_mov_b32 v9, s90
            v_mov_b32 v10, s92
            v_mov_b32 v11, s94
            buffer_store_dwordx4 v[4:7], v0, s[96:99], s78 offen
            buffer_store_dwordx4 v[8:11], v0, s[96:99], s78 offen offset:16
            SD_{self._uid}:
            """)
    def text(self):
        return "\n".join(self.lines) + "\n"
    def srd(self, d, b, nbytes, add=0):
        if add:
            self(f"s_add_u32 s{d}, s{b}, {hex(add)}")
            self(f"s_addc_u32 s{d+1}, s{b+1}, 0")
        else:
            if d != b:
                self(f"s_mov_b32 s{d}, s{b}")
                self(f"s_mov_b32 s{d+1}, s{b+1}")
        self(f"s_mov_b32 s{d+2}, {hex(nbytes)}")
        self(f"s_mov_b32 s{d+3}, 0x00020000")

def vr(a, n=1):
    return f"v{a}" if n == 1 else f"v[{a}:{a+n-1}]"
def sr(a, n=1):
    return f"s{a}" if n == 1 else f"s[{a}:{a+n-1}]"
DPP = "row_mask:0xf bank_mask:0xf"

import struct
def f2u(x):
    return struct.unpack("<I", struct.pack("<f", x))[0]
def fh(x):
    return hex(f2u(x))

def kernel_desc(name, vgpr, sgpr, accum=None):
    accum = accum or ((vgpr + 3) // 4 * 4)
    return f""".p2align 6
.amdhsa_kernel {name}
  .amdhsa_next_free_vgpr {vgpr}
  .amdhsa_next_free_sgpr {sgpr}
  .amdhsa_accum_offset {accum}
  .amdhsa_group_segment_fixed_size 0
  .amdhsa_kernarg_size 120
  .amdhsa_user_sgpr_count 2
  .amdhsa_user_sgpr_kernarg_segment_ptr 1
  .amdhsa_system_sgpr_workgroup_id_x 1
.end_amdhsa_kernel
"""
```

```python
from asmlib import *
from layout import *

K1_LDS = 2 * 64 * 528
ROWS = 528

def cmul(a, dst, src, mul, tmp):
    return [f"v_pk_mul_f32 {vr(tmp,2)}, {vr(src,2)}, {vr(mul,2)} op_sel:[1,1] op_sel_hi:[0,1] neg_lo:[1,0]",
            f"v_pk_fma_f32 {vr(dst,2)}, {vr(src,2)}, {vr(mul,2)}, {vr(tmp,2)} op_sel:[0,0,0] op_sel_hi:[1,0,1]"]

def gen_k1(a, name, stamps=False):
    a(f".globl {name}\n.p2align 8\n.type {name},@function\n{name}:")
    a.stamp_init()
    END = "s_branch K1_END" if a.stamps else "s_endpgm"
    a(f"""
    s_cmp_ge_u32 s2, 512
    s_cbranch_scc1 K1_END
    s_cmp_ge_u32 s2, 256
    s_cbranch_scc1 K1_LN
    """)
    a(f"""
    s_load_dwordx2 s[8:9], s[0:1], 40
    s_load_dwordx2 s[12:13], s[0:1], 8
    s_load_dwordx2 s[16:17], s[0:1], 16
    s_load_dwordx2 s[20:21], s[0:1], 24
    s_load_dwordx2 s[24:25], s[0:1], 32
    s_load_dwordx2 s[28:29], s[0:1], 112
    s_mov_b32 s14, 0x20000
    s_mov_b32 s15, 0x00020000
    s_mov_b32 s18, 0x20000
    s_mov_b32 s19, 0x00020000
    s_mov_b32 s22, 0x20000
    s_mov_b32 s23, 0x00020000
    s_mov_b32 s26, 0x20000
    s_mov_b32 s27, 0x00020000
    s_mov_b32 s30, {hex(WS_SIZE)}
    s_mov_b32 s31, 0x00020000
    s_and_b32 s32, s2, 7
    s_lshl_b32 s32, s32, 5
    s_lshr_b32 s33, s2, 3
    s_add_u32 s32, s32, s33
    s_lshl_b32 s33, s32, 9
    s_lshl_b32 s34, s32, 2             ; c*4
    v_lshrrev_b32 v1, 6, v0            ; wave
    v_and_b32 v2, 63, v0               ; lane
    v_readfirstlane_b32 s35, v1
    v_lshrrev_b32 v3, 8, v0            ; ch
    v_lshlrev_b32 v3, 8, v3
    v_lshl_add_u32 v3, v2, 2, v3
    s_waitcnt lgkmcnt(0)
    s_load_dword s10, s[8:9], s34
    {"s_memrealtime s[82:83]" if a.stamps else ""}
    buffer_load_dword v4, v3, s[12:15], s33 offen
    buffer_load_dword v5, v3, s[16:19], s33 offen
    buffer_load_dword v6, v3, s[20:23], s33 offen
    buffer_load_dword v7, v3, s[24:27], s33 offen
    s_and_b32 s36, s35, 3              ; role
    s_lshr_b32 s37, s35, 2             ; ch
    s_mul_i32 s38, s37, {64*ROWS}
    v_lshlrev_b32 v8, 3, v2
    v_add_u32 v8, s38, v8
    s_mov_b32 s40, {fh(LOG2E)}
    s_mov_b32 s41, 0xffff0000
    s_lshl_b32 s39, s37, 4
    s_waitcnt lgkmcnt(0)
    s_lshr_b32 s10, s10, s39
    s_lshl_b32 s10, s10, 16
    v_mov_b32 v9, s10
    v_mul_f32 v9, s40, v9
    v_exp_f32 v9, v9
    s_mov_b32 s42, {fh(INV2PI)}
    s_mov_b32 s43, {fh(-INV2PI)}
    s_cmp_ge_u32 s36, 2
    s_cselect_b32 s42, s43, s42
    v_cvt_pk_bf16_f32 v9, v9, v9
    v_lshlrev_b32 v9, 16, v9
    s_waitcnt vmcnt(2)
    v_lshlrev_b32 v10, 16, v4
    v_and_b32 v11, s41, v4
    v_mul_f32 v10, s40, v10
    v_mul_f32 v11, s40, v11
    v_exp_f32 v10, v10
    v_exp_f32 v11, v11
    v_lshlrev_b32 v12, 16, v5
    v_and_b32 v13, s41, v5
    v_cvt_pk_bf16_f32 v10, v10, v11
    v_mul_f32 v12, v12, v9             ; zi
    v_mul_f32 v13, v13, v9
    v_and_b32 v11, s41, v10
    v_lshlrev_b32 v10, 16, v10
    v_mul_f32 v12, s42, v12
    v_mul_f32 v13, s42, v13
    v_mul_f32 v10, v10, v9             ; -zr
    v_mul_f32 v11, v11, v9
    v_mul_f32 v10, {fh(-LOG2E)}, v10   ; zr2
    v_mul_f32 v11, {fh(-LOG2E)}, v11
    """)
    a.stamp(2)
    ZR, ZI = 10, 12
    T = 14
    def direct(dst, p):
        a(f"""
        v_mul_f32 v{T}, {p}, v{ZR}
        v_mul_f32 v{T+1}, {p}, v{ZR+1}
        v_mul_f32 v{T+2}, {p}, v{ZI}
        v_mul_f32 v{T+3}, {p}, v{ZI+1}
        v_exp_f32 v{T}, v{T}
        v_exp_f32 v{T+1}, v{T+1}
        v_fract_f32 v{T+2}, v{T+2}
        v_fract_f32 v{T+3}, v{T+3}
        v_cos_f32 v{dst}, v{T+2}
        v_sin_f32 v{dst+1}, v{T+2}
        v_cos_f32 v{dst+2}, v{T+3}
        v_sin_f32 v{dst+3}, v{T+3}
        v_mul_f32 v{dst}, v{dst}, v{T}
        v_mul_f32 v{dst+1}, v{dst+1}, v{T}
        v_mul_f32 v{dst+2}, v{dst+2}, v{T+1}
        v_mul_f32 v{dst+3}, v{dst+3}, v{T+1}
        """)
    TM = 20
    pk_toggle = [0]
    def cmul2(dst, src, mul):
        l0 = cmul(a, dst, src, mul, TM)
        l1 = cmul(a, dst + 2, src + 2, mul + 2, TM + 2)
        a(l0[0]); a(l1[0]); a(l0[1]); a(l1[1])
    def emit_row(src, slots, addr=8):
        p = 24 + 2 * pk_toggle[0]
        pk_toggle[0] ^= 1
        a(f"v_cvt_pk_bf16_f32 v{p}, v{src}, v{src+1}")
        a(f"v_cvt_pk_bf16_f32 v{p+1}, v{src+2}, v{src+3}")
        for s in slots:
            a(f"ds_write_b64 v{addr}, {vr(p,2)} offset:{s*ROWS}")
    V, M, M2, M3, U2, CC = 28, 32, 36, 40, 44, 48
    a("""
    s_cmp_eq_u32 s36, 2
    s_cbranch_scc1 K1_R2
    s_cmp_eq_u32 s36, 3
    s_cbranch_scc1 K1_R3
    """)
    a(f"""
    s_mul_i32 s44, s36, {fh(128.0)}    ; 0.0 or 128.0
    s_mul_i32 s45, s36, {16*ROWS}
    v_add_u32 v8, s45, v8
    """)
    direct(V, "s44")
    direct(M, fh(8.0))
    emit_row(V, [32])
    for i in range(1, 16):
        cmul2(V, V, M)
        emit_row(V, [32 + i])
    a("s_branch K1_ROWS_DONE")
    def load_c():
        a(f"""
        v_add_f32 v9, v9, v9
        s_waitcnt vmcnt(0)
        v_lshlrev_b32 v{CC}, 16, v6
        v_lshlrev_b32 v{CC+1}, 16, v7
        v_and_b32 v{CC+2}, s41, v6
        v_and_b32 v{CC+3}, s41, v7
        v_mul_f32 v{CC}, v{CC}, v9
        v_mul_f32 v{CC+1}, -v{CC+1}, v9
        v_mul_f32 v{CC+2}, v{CC+2}, v9
        v_mul_f32 v{CC+3}, -v{CC+3}, v9
        """)
    a("K1_R2:")
    direct(M, "1.0")
    direct(M2, "2.0")
    direct(M3, fh(256.0))
    load_c()
    emit_row(CC, [0])
    cmul2(U2, CC, M3)
    src = CC
    a_slots = {1: [1], 2: [2], 3: [3], 4: [4, 11], 5: [5], 6: [6], 7: [7], 8: [15]}
    b_slots = [[8], [9], [10, 12], [13], [14]]
    emit_row(U2, b_slots[0])
    for i in range(1, 9):
        cmul2(V, src, M)
        src = V
        emit_row(V, a_slots[i])
        if i <= 4:
            cmul2(U2, U2, M2)
            emit_row(U2, b_slots[i])
    a("s_branch K1_ROWS_DONE")
    a("K1_R3:")
    direct(M, "4.0")
    direct(M3, fh(256.0))
    direct(U2, fh(512.0))
    load_c()
    cmul2(M2, M, M)
    cmul2(U2, U2, CC)
    emit_row(U2, [16])
    cmul2(V, U2, M); emit_row(V, [17])
    cmul2(V, U2, M2); emit_row(V, [18])
    cmul2(U2, U2, M3); emit_row(U2, [20])
    cmul2(V, U2, M); emit_row(V, [21])
    cmul2(V, U2, M2); emit_row(V, [22])
    for k in range(4):
        cmul2(U2, U2, M3); emit_row(U2, [24 + 2 * k])
        cmul2(V, U2, M2); emit_row(V, [25 + 2 * k])
    a("K1_ROWS_DONE:")
    a.stamp(3)
    a(f"""
    v_and_b32 v3, 31, v2
    v_lshrrev_b32 v4, 5, v2
    v_mul_u32_u24 v5, {ROWS}, v3
    v_lshl_add_u32 v5, v4, 4, v5
    v_add_u32 v5, s38, v5
    s_waitcnt lgkmcnt(0)
    s_barrier
    s_cmp_lg_u32 s36, s37
    s_cbranch_scc1 K1_SENT
    """)
    a.stamp(4)
    ACC = 8
    FR = 24
    NB = 6
    def rd(s):
        r = FR + 8 * (s % NB)
        a(f"ds_read_b128 {vr(r,4)}, v5 offset:{32*s}")
        a(f"ds_read_b128 {vr(r+4,4)}, v5 offset:{32*ROWS + 32*s}")
    for s in range(NB):
        rd(s)
    a(f"""
    s_lshl_b32 s44, s32, 1
    s_add_u32 s44, s44, s37            ; d
    s_mul_i32 s44, s44, {KG_STRIDE}
    s_add_u32 s44, s44, {hex(WS_KG)}   ; G base
    s_add_u32 s45, s44, {KG_H}         ; H base
    v_lshlrev_b32 v6, 4, v3            ; 16*b
    v_lshl_add_u32 v7, v4, 3, v6       ; 16b + 8h
    v_sub_u32 v7, {2*(2044-256)}, v7
    v_lshl_add_u32 v88, v4, 9, v6      ; 16b + 512h
    v_sub_u32 v88, {2*(2040-512)}, v88
    v_lshl_add_u32 v89, v4, 10, v6     ; 16b + 1024h
    v_sub_u32 v89, {2*(2040-1280)}, v89
    v_and_b32 v6, 1, v3
    v_cmp_eq_u32 vcc, 1, v6            ; b odd
    """)
    for s in range(16):
        rem = min(15 - s, NB - 1)
        a(f"s_waitcnt lgkmcnt({2*rem})")
        r = FR + 8 * (s % NB)
        c = "0" if s == 0 else vr(ACC, 16)
        a(f"v_mfma_f32_32x32x16_bf16 {vr(ACC,16)}, {vr(r,4)}, {vr(r+4,4)}, {c}")
        if s + NB < 16:
            rd(s + NB)
    a("s_nop 15")
    a.stamp(5)
    d = lambda i: f"v{ACC+i}"
    P = 24
    def pk(dst, lo, hi):
        a(f"v_cvt_pk_bf16_f32 v{dst}, {lo}, {hi}")
    pk(P, d(3), d(2)); pk(P+1, d(1), d(0))
    pk(P+2, d(7), d(3)); pk(P+3, d(2), d(1))
    a(f"buffer_store_dwordx2 {vr(P,2)}, v7, s[28:31], s44 offen offset:512")
    a(f"buffer_store_dwordx2 {vr(P+2,2)}, v7, s[28:31], s45 offen offset:512")
    pk(P+4, d(6), d(5)); pk(P+5, d(4), d(4))
    pk(P+6, d(6), d(6)); pk(P+7, d(5), d(4))
    a(f"buffer_store_dwordx2 {vr(P+4,2)}, v7, s[28:31], s44 offen")
    a(f"buffer_store_dwordx2 {vr(P+6,2)}, v7, s[28:31], s45 offen")
    Q = P + 8
    pk(Q, d(10), d(10)); pk(Q+1, d(9), d(9)); pk(Q+2, d(9), d(8)); pk(Q+3, d(8), d(8))
    pk(Q+4, d(10), d(10)); pk(Q+5, d(10), d(9)); pk(Q+6, d(9), d(9)); pk(Q+7, d(8), d(8))
    a(f"buffer_store_dwordx4 {vr(Q,4)}, v88, s[28:31], s44 offen")
    a(f"buffer_store_dwordx4 {vr(Q+4,4)}, v88, s[28:31], s45 offen")
    for k in range(2):
        Q = P + 16 + 8 * k
        r0, r1 = d(12 + 2 * k), d(13 + 2 * k)
        a(f"v_cndmask_b32 v6, {r0}, {r1}, vcc")
        pk(Q, r1, r1); pk(Q+1, r1, "v6"); pk(Q+2, r0, r0); pk(Q+3, r0, r0)
        pk(Q+4, r1, r1); pk(Q+5, r1, r1); pk(Q+6, "v6", r0); pk(Q+7, r0, r0)
        off = " offset:512" if k == 0 else ""
        a(f"buffer_store_dwordx4 {vr(Q,4)}, v89, s[28:31], s44 offen{off}")
        a(f"buffer_store_dwordx4 {vr(Q+4,4)}, v89, s[28:31], s45 offen{off}")
    Q = P + 32
    a(f"""
    v_cvt_pk_bf16_f32 v{Q}, {d(0)}, 0
    v_cmp_eq_u32 vcc, 0, v2
    v_mov_b32 v{Q+1}, 0
    v_mov_b32 v{Q+2}, 0
    v_cndmask_b32 v{Q}, 0, v{Q}, vcc
    v_mov_b32 v{Q+3}, 0
    v_mov_b32 v6, 4096
    v_mov_b32 v3, {4096+KG_H}
    v_cndmask_b32 v6, v6, v3, vcc
    s_mov_b64 exec, 3
    buffer_store_dwordx4 {vr(Q,4)}, v6, s[28:31], s44 offen
    {END}
    K1_SENT:
    s_cmp_ge_u32 s35, 3
    s_cbranch_scc1 K1_END
    v_subrev_u32 v3, 64, v0
    v_cmp_gt_u32 vcc, {NSLICE}, v3
    v_lshlrev_b32 v3, 4, v3
    v_mov_b32 v24, -1
    v_mov_b32 v25, -1
    v_mov_b32 v26, -1
    v_mov_b32 v27, -1
    s_mul_i32 s44, s2, {NSLICE*16}
    s_add_u32 s44, s44, {hex(WS_PART)}
    s_and_b64 exec, exec, vcc
    buffer_store_dwordx4 v[24:27], v3, s[28:31], s44 offen
    {END}
    """)
    RS = 2112
    KEYL = 8 * RS
    a("K1_LN:")
    a(f"""
    s_load_dwordx2 s[12:13], s[0:1], 0
    s_load_dwordx2 s[16:17], s[0:1], 64
    s_load_dwordx2 s[20:21], s[0:1], 112
    s_mov_b32 s14, 0x200000
    s_mov_b32 s15, 0x00020000
    s_mov_b32 s18, 1024
    s_mov_b32 s19, 0x00020000
    s_mov_b32 s22, {hex(WS_SIZE)}
    s_mov_b32 s23, 0x00020000
    s_sub_u32 s3, s2, 256
    s_and_b32 s24, s3, 7
    s_lshl_b32 s24, s24, 5
    s_lshr_b32 s25, s3, 3
    s_add_u32 s24, s24, s25
    s_lshl_b32 s26, s24, 13
    v_lshlrev_b32 v1, 4, v0
    v_and_b32 v2, 63, v0
    v_lshlrev_b32 v3, 4, v2
    v_lshrrev_b32 v20, 6, v0           ; wave
    s_waitcnt lgkmcnt(0)
    {"s_memrealtime s[82:83]" if a.stamps else ""}
    buffer_load_dwordx4 v[4:7], v1, s[12:15], s26 offen
    buffer_load_dwordx4 v[8:11], v3, s[16:19], 0 offen
    v_readfirstlane_b32 s35, v20
    v_mul_u32_u24 v21, {RS}, v20
    v_lshl_add_u32 v21, v2, 5, v21
    v_bfe_u32 v22, v2, 2, 2            ; r
    v_mul_u32_u24 v22, {RS}, v22
    v_lshrrev_b32 v23, 4, v2           ; G
    v_lshlrev_b32 v23, 2, v23
    v_and_b32 v28, 3, v2
    v_add_u32 v23, v23, v28
    v_lshl_add_u32 v23, v20, 5, v23    ; 32w + 4G + cc
    v_lshl_add_u32 v22, v23, 3, v22
    s_lshr_b32 s30, s24, 2
    v_add_u32 v28, s30, v28
    v_and_b32 v28, 3, v28
    v_lshlrev_b32 v28, 4, v28
    v_lshrrev_b32 v23, 2, v2
    v_lshl_add_u32 v23, v20, 5, v23    ; c = 32w + lane>>2
    v_lshl_add_u32 v23, v23, 14, v28
    s_lshl_b32 s36, s24, 6
    s_add_u32 s37, s36, 0x40000
    s_mov_b32 s41, 0xffff0000
    s_waitcnt vmcnt(1)
    """)
    a.stamp(2)
    F = 12
    a(f"""
    v_lshlrev_b32 v{F}, 16, v4
    v_and_b32 v{F+1}, s41, v4
    v_readfirstlane_b32 s30, v{F}
    v_lshlrev_b32 v{F+2}, 16, v5
    v_and_b32 v{F+3}, s41, v5
    v_lshlrev_b32 v{F+4}, 16, v6
    v_and_b32 v{F+5}, s41, v6
    v_lshlrev_b32 v{F+6}, 16, v7
    v_and_b32 v{F+7}, s41, v7
    """)
    D = 30
    for i in range(4):
        a(f"v_pk_add_f32 {vr(D+2*i,2)}, {vr(F+2*i,2)}, s[30:31] op_sel_hi:[1,0] neg_lo:[0,1] neg_hi:[0,1]")
    a(f"""
    v_pk_mul_f32 v[38:39], v[30:31], v[30:31]
    v_pk_add_f32 v[48:49], v[30:31], v[32:33]
    v_pk_fma_f32 v[38:39], v[32:33], v[32:33], v[38:39]
    v_pk_add_f32 v[50:51], v[34:35], v[36:37]
    v_pk_fma_f32 v[38:39], v[34:35], v[34:35], v[38:39]
    v_pk_add_f32 v[48:49], v[48:49], v[50:51]
    v_pk_fma_f32 v[38:39], v[36:37], v[36:37], v[38:39]
    v_add_f32 v48, v48, v49
    v_add_f32 v38, v38, v39
    v_mov_b32 v41, v4
    v_mov_b32 v43, v5
    v_permlane32_swap_b32 v48, v38
    v_mov_b32 v45, v6
    v_add_f32 v48, v48, v38
    v_mov_b32 v47, v7
    s_nop 0
    v_add_f32_dpp v48, v48, v48 row_ror:8 {DPP}
    s_nop 1
    v_add_f32_dpp v48, v48, v48 row_ror:4 {DPP}
    s_nop 1
    v_add_f32_dpp v48, v48, v48 row_ror:2 {DPP}
    s_nop 1
    v_add_f32_dpp v48, v48, v48 row_ror:1 {DPP}
    s_nop 1
    v_add_f32_dpp v48, v48, v48 row_bcast:15 row_mask:0xa bank_mask:0xf
    s_nop 0
    v_readlane_b32 s32, v48, 31
    v_readlane_b32 s33, v48, 63
    v_mov_b32 v50, {fh(1.0/512)}
    v_mul_f32 v48, s32, v50            ; md
    v_mul_f32 v49, s33, v50            ; E[d^2]
    v_fma_f32 v49, -v48, v48, v49      ; var
    v_add_f32 v48, s30, v48            ; mean
    v_max_f32 v49, 0, v49
    v_cvt_pk_bf16_f32 v49, v48, v49
    v_lshlrev_b32 v48, 16, v49         ; m
    v_and_b32 v50, s41, v49            ; v
    v_add_f32 v50, {fh(1e-5)}, v50
    v_pk_add_f32 v[30:31], v[{F}:{F+1}], v[48:49] op_sel_hi:[1,0] neg_lo:[0,1] neg_hi:[0,1]
    v_cvt_pk_bf16_f32 v50, v50, v50
    v_pk_add_f32 v[32:33], v[{F+2}:{F+3}], v[48:49] op_sel_hi:[1,0] neg_lo:[0,1] neg_hi:[0,1]
    v_lshlrev_b32 v50, 16, v50
    v_pk_add_f32 v[34:35], v[{F+4}:{F+5}], v[48:49] op_sel_hi:[1,0] neg_lo:[0,1] neg_hi:[0,1]
    v_sqrt_f32 v50, v50
    v_pk_add_f32 v[36:37], v[{F+6}:{F+7}], v[48:49] op_sel_hi:[1,0] neg_lo:[0,1] neg_hi:[0,1]
    v_cvt_pk_bf16_f32 v50, v50, v50
    v_cvt_pk_bf16_f32 v31, v30, v31
    v_lshlrev_b32 v50, 16, v50
    v_cvt_pk_bf16_f32 v33, v32, v33
    v_rcp_f32 v50, v50
    v_cvt_pk_bf16_f32 v35, v34, v35
    v_cvt_pk_bf16_f32 v37, v36, v37
    """)
    for i in range(4):
        a(f"v_lshlrev_b32 v{30+2*i}, 16, v{31+2*i}")
        a(f"v_and_b32 v{31+2*i}, s41, v{31+2*i}")
    for i in range(4):
        a(f"v_pk_mul_f32 {vr(30+2*i,2)}, {vr(30+2*i,2)}, v[50:51] op_sel_hi:[1,0]")
    for i in range(4):
        a(f"v_cvt_pk_bf16_f32 v{40+2*i}, v{30+2*i}, v{31+2*i}")
    a(f"""
    {"s_memrealtime s[86:87]" if a.stamps else ""}
    v_mov_b32 v52, 0
    ds_write_b128 v21, v[40:43]
    ds_write_b128 v21, v[44:47] offset:16
    s_waitcnt vmcnt(0)
    v_dot2c_f32_bf16 v52, v40, v8
    v_dot2c_f32_bf16 v52, v42, v9
    v_dot2c_f32_bf16 v52, v44, v10
    v_dot2c_f32_bf16 v52, v46, v11
    s_waitcnt lgkmcnt(0)
    s_barrier
    {"s_memrealtime s[88:89]" if a.stamps else ""}
    ds_read_b64_tr_b16 v[56:57], v22
    ds_read_b64_tr_b16 v[58:59], v22 offset:{4*RS}
    ds_read_b64_tr_b16 v[60:61], v22 offset:128
    ds_read_b64_tr_b16 v[62:63], v22 offset:{4*RS+128}
    v_add_f32_dpp v52, v52, v52 row_ror:8 {DPP}
    s_nop 1
    v_add_f32_dpp v52, v52, v52 row_ror:4 {DPP}
    s_nop 1
    v_add_f32_dpp v52, v52, v52 row_ror:2 {DPP}
    s_nop 1
    v_add_f32_dpp v52, v52, v52 row_ror:1 {DPP}
    s_waitcnt lgkmcnt(2)
    buffer_store_dwordx4 v[56:59], v23, s[20:23], s36 offen
    v_add_f32_dpp v52, v52, v52 row_bcast:15 row_mask:0xa bank_mask:0xf
    s_waitcnt lgkmcnt(0)
    buffer_store_dwordx4 v[60:63], v23, s[20:23], s37 offen
    v_add_f32_dpp v52, v52, v52 row_bcast:31 row_mask:0xc bank_mask:0xf
    {"s_memrealtime s[90:91]" if a.stamps else ""}
    s_lshl_b32 s38, s24, 3
    v_cvt_pk_bf16_f32 v52, v52, v52
    s_add_u32 s38, s38, s35            ; token
    v_readlane_b32 s33, v52, 63
    s_sub_u32 s39, 2047, s38
    s_lshl_b32 s40, s35, 2
    s_add_u32 s40, s40, {KEYL}
    s_ashr_i32 s34, s33, 31
    s_or_b32 s34, s34, 0x80000000
    s_xor_b32 s33, s33, s34
    s_and_b32 s33, s33, 0xffff0000
    s_or_b32 s33, s33, s39             ; key
    v_mov_b32 v53, s33
    v_mov_b32 v54, s40
    v_and_b32 v55, 7, v2
    v_lshlrev_b32 v55, 2, v55
    s_mov_b64 exec, 1
    ds_write_b32 v54, v53
    s_mov_b64 exec, 0xff
    s_waitcnt lgkmcnt(0)
    s_barrier
    ds_read_b32 v54, v55 offset:{KEYL}
    s_waitcnt lgkmcnt(0)
    v_cmp_lt_u32 vcc, s33, v54
    s_mov_b64 exec, -1
    s_bcnt1_i32_b64 s40, vcc
    s_cmp_ge_u32 s40, 2
    s_cbranch_scc1 K1_END
    v_mov_b32 v41, v42
    v_mov_b32 v42, v44
    v_mov_b32 v43, v46
    s_lshl_b32 s38, s38, 10
    s_add_u32 s38, s38, {hex(WS_CAND)}
    s_lshl_b32 s39, s24, 1
    s_add_u32 s39, s39, s40
    s_lshl_b32 s39, s39, 2
    s_add_u32 s39, s39, {hex(WS_KEYS)}
    v_mov_b32 v54, 0
    buffer_store_dwordx4 v[40:43], v3, s[20:23], s38 offen
    s_mov_b64 exec, 1
    buffer_store_dword v53, v54, s[20:23], s39 offen
    K1_END:
    """)
    a.stamp_dump(WS_STAMP, 8, 512)
    a("s_endpgm")
    return dict(vgpr=96, sgpr=(102 if a.stamps else 48), lds=K1_LDS, grid=512, block=512)
```

```python
from asmlib import *
from layout import *

XB = 2048
KI = XB + 16384
KCS = 4160
DB = KI + 8 * KCS
FW = DB + 32768
FP = FW + 32768
FLAGS = FP + 1024
DUM = FLAGS + 192
K2_LDS = DUM + 512
FS_DMA0, FS_DMA1, FS_FFN, FS_TOP = 8, 9, 10, 11
SPIN_BUDGET = 200000

def gen_k2(a, name, stamps=False):
    a(f".globl {name}\n.p2align 8\n.type {name},@function\n{name}:")
    a.stamp_init()
    ST = lambda i: (f"s_memrealtime s[{80+2*i}:{81+2*i}]" if a.stamps else "")
    a(f"""
    s_cmp_ge_u32 s2, 256
    s_cbranch_scc1 K2_END
    s_load_dwordx2 s[12:13], s[0:1], 112
    v_lshrrev_b32 v1, 6, v0
    v_and_b32 v0, 63, v0               ; lane
    v_readfirstlane_b32 s4, v1         ; wave
    s_mov_b32 s14, {hex(WS_SIZE)}
    s_mov_b32 s15, 0x00020000
    s_and_b32 s5, s2, 7
    s_lshr_b32 s6, s2, 3
    s_lshl_b32 s7, s5, 5
    s_add_u32 s7, s7, s6               ; c
    s_mov_b32 s3, {SPIN_BUDGET}
    s_cmp_ge_u32 s4, 8
    s_cbranch_scc1 K2_FFN
    s_cmp_ge_u32 s4, 4
    s_cbranch_scc1 K2_EPI
    """)
    def spin_check(t, lab):
        ok = a.uid("K2_OK")
        a(f"""
        v_min3_u32 v{t}, v{t}, v{t+1}, v{t+2}
        v_min_u32 v{t}, v{t}, v{t+3}
        v_cmp_eq_u32 vcc, 0, v{t}
        s_cbranch_vccz {ok}
        s_sub_u32 s3, s3, 1
        s_cbranch_scc1 K2_END
        s_sleep 1
        s_branch {lab}
        {ok}:
        """)
    def flag_addr(dst, widx):
        a(f"""
        s_lshl_b32 s40, {widx}, 2
        s_add_u32 s40, s40, {FLAGS}
        v_lshlrev_b32 v{dst}, 2, v0
        v_add_u32 v{dst}, {DUM}, v{dst}
        v_writelane_b32 v{dst}, s40, 0
        """)
    vA, vF, vFl, vD, vOne = 1, 2, 6, 7, 0
    SLOT0, NSLOT, ACC0 = 8, 32, 136
    a(f"""
    s_lshr_b32 s16, s4, 1              ; ch
    s_and_b32 s17, s4, 1
    s_lshl_b32 s18, s7, 1
    s_add_u32 s18, s18, s16
    s_mul_i32 s18, s18, {KG_STRIDE}
    s_mul_i32 s19, s17, {KG_H+4}
    s_add_u32 s18, s18, s19
    s_add_u32 s18, s18, {hex(WS_KG)}
    s_add_u32 s19, s18, 4
    s_lshl_b32 s20, s16, 2
    s_sub_u32 s20, s20, s17
    s_add_u32 s20, s20, 1
    s_mul_i32 s21, s20, {KCS}
    s_add_u32 s21, s21, {KI}
    s_add_u32 s20, s21, {2*KCS}
    s_lshl_b32 s22, s7, 14
    s_lshl_b32 s23, s4, 10
    s_add_u32 s22, s22, s23
    s_add_u32 s23, s23, {XB}
    v_lshlrev_b32 v8, 4, v0
    s_waitcnt lgkmcnt(0)
    {ST(1)}
    """)
    for r in range(4):
        q = 3 - r
        a(f"""
        s_mov_b32 m0, s23
        s_add_u32 s23, s23, 4096
        buffer_load_dwordx4 v8, s[12:15], s22 offen lds
        s_mov_b32 m0, s20
        s_add_u32 s22, s22, 4096
        buffer_load_dwordx4 v8, s[12:15], s18 offen offset:{1024*q} lds
        s_mov_b32 m0, s21
        s_nop 0
        buffer_load_dwordx4 v8, s[12:15], s19 offen offset:{1024*q} lds
        """)
    a(f"""
    v_and_b32 v9, 15, v0               ; i / n
    v_lshrrev_b32 v10, 4, v0           ; g
    v_and_b32 v11, 3, v9               ; c
    v_lshrrev_b32 v12, 2, v9           ; ih
    s_mul_i32 s24, s16, {4*KCS}
    s_lshl_b32 s25, s17, 8
    s_sub_u32 s24, s24, s25
    s_add_u32 s24, s24, {KI + 2*2028 - 64*59}
    v_mul_u32_u24 v{vA}, {KCS}, v11
    v_lshl_add_u32 v{vA}, v10, 4, v{vA}
    v_lshlrev_b32 v12, 3, v12
    v_sub_u32 v{vA}, v{vA}, v12
    v_add_u32 v{vA}, s24, v{vA}
    s_lshl_b32 s25, s17, 4
    s_sub_u32 s25, 30, s25
    v_lshl_add_u32 v11, v9, 1, v10
    v_add_u32 v11, s25, v11            ; t0 + 32
    """)
    for tp in range(4):
        a(f"""
        v_subrev_u32 v12, {4*tp}, v11
        v_lshrrev_b32 v13, 2, v12
        v_add_u32 v13, s16, v13
        v_and_b32 v13, 3, v13
        v_lshlrev_b32 v13, 4, v13
        v_lshl_add_u32 v{vF+tp}, v12, 6, v13
        """)
    flag_addr(vFl, "s4")
    a(f"""
    s_lshl_b32 s24, s4, 10
    s_add_u32 s24, s24, {DB}
    v_add_u32 v{vD}, s24, v8
    v_mov_b32 v{vOne}, 1
    v_mov_b32 v132, {FLAGS}
    {ST(2)}
    s_barrier
    s_waitcnt vmcnt(9)
    {ST(3)}
    ds_write_b32 v{vFl}, v{vOne} offset:{16*FS_DMA0}
    K2_M_SP0:
    ds_read_b128 v[128:131], v132 offset:{16*FS_DMA0}
    s_waitcnt lgkmcnt(0)
    """)
    spin_check(128, "K2_M_SP0")
    a.stamp(4)
    stages = [
        ([0], [(0,0)]),
        ([1], [(1,0),(0,1),(1,1)]),
        ([2], [(2,0),(0,2),(2,1),(1,2),(2,2)]),
        ([3,4], [(3,0),(0,3),(3,1),(1,3),(3,2),(2,3),(3,3),(4,0),(0,4),(4,1),(1,4),(4,2),(2,4),(4,3),(3,4)]),
        ([5], [(5,0),(0,5),(5,1),(1,5),(5,2),(2,5)]),
        ([6], [(6,0),(0,6),(6,1),(1,6)]),
        ([7], [(7,0),(0,7)]),
    ]
    mf = []
    for blks, pairs in stages:
        for tp in range(4):
            for (s_, j_) in pairs:
                mf.append((s_, j_, tp))
    first, last = {}, {}
    for idx, (s_, j_, tp) in enumerate(mf):
        for fr in (("A", s_, tp), ("F", j_, tp)):
            first.setdefault(fr, idx)
            last[fr] = idx
    order = sorted(first, key=lambda fr: first[fr])
    lastacc = {}
    for idx, (s_, j_, tp) in enumerate(mf):
        lastacc[s_ + j_] = idx
    free = list(range(NSLOT - 2))
    slot = {}
    opno = [0]
    done = [0]
    ready_at = {}
    qi = [0]
    gate_open = [False]
    def lds_room(n):
        return opno[0] + n - done[0] <= 15
    def issue(fr):
        kind, b, tp = fr
        sl = free.pop(0)
        slot[fr] = sl
        r = SLOT0 + 4 * sl
        if kind == "A":
            off = 64 * (59 - 8 * b - tp)
            a(f"ds_read_b64 {vr(r,2)}, v{vA} offset:{off}")
            a(f"ds_read_b64 {vr(r+2,2)}, v{vA} offset:{off+8}")
            opno[0] += 2
        else:
            a(f"ds_read_b128 {vr(r,4)}, v{vF+tp} offset:{2048*b}")
            opno[0] += 1
        ready_at[fr] = opno[0]
    def prefetch(maxn):
        n = 0
        while qi[0] < len(order) and n < maxn:
            fr = order[qi[0]]
            if fr[1] >= 2 and not gate_open[0]:
                break
            if not free or not lds_room(2 if fr[0] == "A" else 1):
                break
            issue(fr); qi[0] += 1; n += 1
    def wait_for(op):
        if op > done[0]:
            a(f"s_waitcnt lgkmcnt({opno[0]-op})")
            done[0] = op
    started = set()
    pending_w = []
    def flush_writes(force=False):
        for pw in list(pending_w):
            if pw[1] <= 0 or force:
                if force and pw[1] > 0:
                    a(f"s_nop {pw[1]-1}")
                if not lds_room(2):
                    wait_for(opno[0] - 13)
                nb = pw[0]
                a(f"ds_write_b128 v{vD}, {vr(ACC0+4*nb,4)} offset:{4096*nb}")
                a(f"ds_write_b32 v{vFl}, v{vOne} offset:{16*nb}")
                opno[0] += 2
                pending_w.remove(pw)
    prefetch(100)
    for idx, (s_, j_, tp) in enumerate(mf):
        fa, ff = ("A", s_, tp), ("F", j_, tp)
        if s_ == 2 and j_ == 0 and tp == 0:
            flush_writes(force=True)
            a(f"""
            s_waitcnt vmcnt(0)
            ds_write_b32 v{vFl}, v{vOne} offset:{16*FS_DMA1}
            K2_M_SP1:
            ds_read_b128 v[128:131], v132 offset:{16*FS_DMA1}
            s_waitcnt lgkmcnt(0)
            """)
            spin_check(128, "K2_M_SP1")
            a.stamp(5)
            done[0] = opno[0]
            gate_open[0] = True
            free.extend([30, 31])
            prefetch(100)
        while fa not in slot or ff not in slot:
            if not lds_room(2):
                wait_for(opno[0] - 12)
            n0 = qi[0]
            prefetch(1)
            assert qi[0] > n0, "scheduler stuck"
        wait_for(max(ready_at[fa], ready_at[ff]))
        nb = s_ + j_
        acc = vr(ACC0 + 4 * nb, 4)
        c = acc if nb in started else "0"
        started.add(nb)
        a(f"v_mfma_f32_16x16x32_bf16 {acc}, {vr(SLOT0+4*slot[fa],4)}, {vr(SLOT0+4*slot[ff],4)}, {c}")
        for pw in pending_w:
            pw[1] -= 1
        for fr in (fa, ff):
            if last[fr] == idx:
                free.append(slot[fr])
        if lastacc[nb] == idx:
            pending_w.append([nb, 8])
        flush_writes()
        prefetch(1)
    flush_writes(force=True)
    a.stamp(6)
    a.end("K2_END")

    a("K2_EPI:")
    vX, vO, vDr, vFs = 1, 5, 6, 7
    a(f"""
    s_load_dwordx2 s[16:17], s[0:1], 96
    s_load_dwordx2 s[20:21], s[0:1], 48
    s_sub_u32 s4, s4, 4                ; e
    s_mov_b32 s18, 0x200000
    s_mov_b32 s19, 0x00020000
    s_lshl_b32 s24, s4, 6
    v_add_u32 v8, s24, v0              ; idx 0..255
    v_lshlrev_b32 v9, 4, v8            ; idx*16
    v_subrev_u32 v10, 128, v8
    v_lshrrev_b32 v11, 2, v10
    v_mul_u32_u24 v11, {KCS}, v11
    v_and_b32 v12, 3, v10
    v_lshl_add_u32 v11, v12, 4, v11
    v_add_u32 v11, {KI+4096}, v11
    v_subrev_u32 v10, 160, v8
    v_min_u32 v10, 24, v10
    v_lshlrev_b32 v10, 4, v10
    v_add_u32 v10, {FLAGS}, v10
    v_cmp_gt_u32 vcc, 160, v8
    v_mov_b32 v12, 0
    v_mov_b32 v13, 0
    v_cndmask_b32 v10, v10, v11, vcc
    v_cmp_gt_u32 vcc, 128, v8
    v_mov_b32 v14, 0
    v_mov_b32 v15, 0
    v_cndmask_b32 v10, v10, v9, vcc
    ds_write_b128 v10, v[12:15]
    s_lshl_b32 s25, s7, 2              ; c*4
    s_waitcnt lgkmcnt(0)
    s_barrier
    s_load_dword s22, s[20:21], s25
    v_and_b32 v9, 15, v0               ; n
    v_lshrrev_b32 v10, 4, v0           ; g
    v_lshrrev_b32 v11, 1, v10
    v_lshl_add_u32 v11, v9, 1, v11     ; t_local
    v_lshlrev_b32 v11, 6, v11
    v_and_b32 v12, 1, v10
    v_lshl_add_u32 v11, v12, 3, v11
    s_lshl_b32 s24, s4, 11
    s_add_u32 s24, s24, {XB}
    v_add_u32 v11, s24, v11
    v_lshrrev_b32 v12, 1, v9           ; rot
    """)
    for k in range(4):
        a(f"""
        v_add_u32 v13, {k}, v12
        v_and_b32 v13, 3, v13
        v_lshl_add_u32 v{vX+k}, v13, 4, v11
        """)
    a(f"""
    v_lshlrev_b32 v13, 2, v9
    v_add_u32 v13, v13, v10            ; 4n+g
    v_lshlrev_b32 v{vO}, 12, v13       ; (16n+4g)*1024
    v_lshlrev_b32 v80, 2, v13
    s_lshl_b32 s24, s4, 12
    s_add_u32 s24, s24, {DB}
    v_lshlrev_b32 v{vDr}, 4, v0
    v_add_u32 v{vDr}, s24, v{vDr}
    s_lshl_b32 s24, s4, 4
    s_add_u32 s24, s24, {FLAGS}
    v_mov_b32 v{vFs}, s24
    s_cmp_lt_u32 s4, 2
    s_cselect_b32 s24, 0, 16
    s_add_u32 s24, s24, {FLAGS+16*FS_DMA0}
    v_mov_b32 v81, s24
    v_mov_b32 v82, {FLAGS+16*FS_TOP}
    s_lshl_b32 s26, s4, 18
    s_add_u32 s26, s26, s25
    s_mov_b32 s27, s4                  ; nb
    s_mov_b32 s41, 0xffff0000
    s_mov_b32 s42, {fh(-LOG2E)}
    s_waitcnt lgkmcnt(0)
    s_lshl_b32 s28, s22, 16            ; D ch0
    s_and_b32 s30, s22, s41            ; D ch1
    K2_E_LOOP:
    ds_read_b128 v[8:11], v81
    ds_read_b64 v[12:13], v{vX}
    ds_read_b64 v[14:15], v{vX+1}
    ds_read_b64 v[16:17], v{vX+2}
    ds_read_b64 v[18:19], v{vX+3}
    s_waitcnt lgkmcnt(0)
    """)
    spin_check(8, "K2_E_LOOP")
    a.stamp(4)
    XN, XX, G, T = 20, 28, 36, 44
    for ch in range(2):
        for h in range(2):
            a(f"v_lshlrev_b32 v{XN+4*ch+2*h}, 16, v{12+2*ch+h}")
            a(f"v_and_b32 v{XN+4*ch+2*h+1}, s41, v{12+2*ch+h}")
    for i in range(4):
        a(f"v_pk_mul_f32 {vr(T+2*i,2)}, {vr(XN+2*i,2)}, s[42:43] op_sel_hi:[1,0]")
    for i in range(8):
        a(f"v_exp_f32 v{T+i}, v{T+i}")
        ch, h, lo = i // 4, (i // 2) % 2, i % 2
        if lo == 0:
            a(f"v_lshlrev_b32 v{XX+i}, 16, v{16+2*ch+h}")
        else:
            a(f"v_and_b32 v{XX+i}, s41, v{16+2*ch+h}")
    for i in range(4):
        a(f"v_pk_add_f32 {vr(T+2*i,2)}, {vr(T+2*i,2)}, 1.0 op_sel_hi:[1,0]")
    for i in range(8):
        a(f"v_rcp_f32 v{T+i}, v{T+i}")
    a("s_nop 0")
    for i in range(4):
        a(f"v_pk_mul_f32 {vr(G+2*i,2)}, {vr(T+2*i,2)}, {vr(XN+2*i,2)}")
    for i in range(4):
        sp = "s[28:29]" if i < 2 else "s[30:31]"
        a(f"v_pk_mul_f32 {vr(T+2*i,2)}, {vr(XN+2*i,2)}, {sp} op_sel_hi:[1,0]")
    for i in range(4):
        a(f"v_pk_fma_f32 {vr(XX+2*i,2)}, {vr(T+2*i,2)}, {vr(G+2*i,2)}, {vr(XX+2*i,2)}")
    a(f"""
    K2_E_SPT:
    ds_read_b128 v[8:11], v82
    s_waitcnt lgkmcnt(0)
    v_readfirstlane_b32 s32, v8
    v_readfirstlane_b32 s33, v9
    """)
    spin_check(8, "K2_E_SPT")
    a(f"""
    s_and_b32 s32, s32, 0x7ff
    s_and_b32 s33, s33, 0x7ff
    s_lshl_b32 s34, s27, 8
    s_sub_u32 s34, 2047, s34
    s_sub_u32 s32, s34, s32
    s_sub_u32 s33, s34, s33
    v_mov_b32 v76, v{vO}
    v_add_u32 v77, 1024, v{vO}
    v_add_u32 v78, 2048, v{vO}
    v_add_u32 v79, 3072, v{vO}
    s_min_u32 s34, s32, s33
    s_cmp_ge_u32 s34, 256
    s_cbranch_scc1 K2_E_SPD
    v_bfrev_b32 v83, 1
    """)
    for r in range(4):
        a(f"""
        v_add_u32 v84, {r}, v80
        v_cmp_eq_u32 vcc, s32, v84
        v_cmp_eq_u32 s[36:37], s33, v84
        s_or_b64 vcc, vcc, s[36:37]
        v_cndmask_b32 v{76+r}, v{76+r}, v83, vcc
        """)
    Y = 56
    a(f"""
    K2_E_SPD:
    ds_read_b128 v[8:11], v{vFs}
    ds_read_b128 {vr(Y,4)}, v{vDr}
    ds_read_b128 {vr(Y+4,4)}, v{vDr} offset:1024
    ds_read_b128 {vr(Y+8,4)}, v{vDr} offset:2048
    ds_read_b128 {vr(Y+12,4)}, v{vDr} offset:3072
    s_waitcnt lgkmcnt(0)
    """)
    spin_check(8, "K2_E_SPD")
    a.stamp(5)
    for ch in range(2):
        for h in range(2):
            a(f"v_pk_add_f32 {vr(Y+8*ch+2*h,2)}, {vr(Y+8*ch+2*h,2)}, {vr(Y+8*ch+4+2*h,2)}")
    for h in range(2):
        for ch in range(2):
            a(f"v_pk_fma_f32 {vr(XX+4*ch+2*h,2)}, {vr(Y+8*ch+2*h,2)}, {vr(G+4*ch+2*h,2)}, {vr(XX+4*ch+2*h,2)}")
    for r in range(4):
        a(f"v_cvt_pk_bf16_f32 v{72+r}, v{XX+r}, v{XX+4+r}")
        a(f"buffer_store_dword v{72+r}, v{76+r}, s[16:19], s26 offen")
    a(f"""
    {ST(6)}
    s_cmp_ge_u32 s27, 4
    s_cbranch_scc1 K2_END
    {"s_waitcnt lgkmcnt(0)" if a.stamps else ""}
    {"s_mov_b32 s82, s88" if a.stamps else ""}
    {"s_mov_b32 s84, s90" if a.stamps else ""}
    {"s_mov_b32 s86, s92" if a.stamps else ""}
    s_add_u32 s27, s27, 4
    s_add_u32 s26, s26, 0x100000
    v_add_u32 v{vX}, 8192, v{vX}
    v_add_u32 v{vX+1}, 8192, v{vX+1}
    v_add_u32 v{vX+2}, 8192, v{vX+2}
    v_add_u32 v{vX+3}, 8192, v{vX+3}
    v_add_u32 v{vDr}, 16384, v{vDr}
    v_add_u32 v{vFs}, 64, v{vFs}
    v_mov_b32 v81, {FLAGS+16*FS_DMA1}
    s_branch K2_E_LOOP
    """)

    a("K2_FFN:")
    a(f"""
    s_sub_u32 s4, s4, 8                ; f
    s_mul_i32 s8, s5, 11
    s_add_u32 s8, s8, s6               ; slice
    s_cmp_lt_u32 s6, 11
    s_cselect_b32 s8, s8, 1000
    s_cmp_lt_u32 s8, {NSLICE}
    s_cselect_b32 s9, 1, 0
    s_cbranch_scc1 K2_F_GO
    s_cmp_lg_u32 s4, 0
    s_cbranch_scc1 K2_END
    K2_F_GO:
    s_load_dwordx2 s[16:17], s[0:1], 72
    s_load_dwordx2 s[20:21], s[0:1], 80
    s_load_dwordx2 s[24:25], s[0:1], 88
    s_load_dwordx2 s[28:29], s[0:1], 96
    s_load_dwordx2 s[32:33], s[0:1], 48
    s_mov_b32 s18, {512*2752}
    s_mov_b32 s19, 0x00020000
    s_mov_b32 s22, {512*2752}
    s_mov_b32 s23, 0x00020000
    s_mov_b32 s26, {1376*1024}
    s_mov_b32 s27, 0x00020000
    s_mov_b32 s30, 0x200000
    s_mov_b32 s31, 0x00020000
    s_mov_b32 s34, {hex(WS_KEYS)}
    v_lshlrev_b32 v1, 5, v0
    s_waitcnt lgkmcnt(0)
    buffer_load_dwordx4 v[8:11], v1, s[12:15], s34 offen
    buffer_load_dwordx4 v[12:15], v1, s[12:15], s34 offen offset:16
    s_lshl_b32 s35, s7, 2
    s_load_dword s36, s[32:33], s35
    s_cmp_eq_u32 s9, 0
    s_cbranch_scc1 K2_F_NOLOAD
    s_lshl_b32 s37, s4, 7
    v_lshrrev_b32 v2, 1, v0
    v_add_u32 v2, s37, v2
    v_mul_u32_u24 v2, 2752, v2
    v_and_b32 v3, 1, v0
    v_lshl_add_u32 v2, v3, 4, v2
    s_lshl_b32 s38, s8, 5              ; slice*32
    s_lshl_b32 s39, s4, 13
    s_add_u32 s39, s39, {FW}
    """)
    for i in range(4):
        a(f"""
        s_add_u32 s40, s39, {1024*i}
        s_mov_b32 m0, s40
        s_add_u32 s40, s40, 4096
        buffer_load_dwordx4 v2, s[16:19], s38 offen lds
        s_mov_b32 m0, s40
        s_nop 0
        buffer_load_dwordx4 v2, s[20:23], s38 offen lds
        s_add_u32 s38, s38, {32*2752}
        """)
    WD = 32
    a(f"""
    s_lshl_b32 s37, s4, 8
    v_lshlrev_b32 v3, 2, v0
    v_add_u32 v3, s37, v3
    s_lshl_b32 s38, s8, 14
    """)
    for i in range(16):
        a(f"buffer_load_dword v{WD+i}, v3, s[24:27], s38 offen offset:{1024*(i%4)}")
        if i % 4 == 3 and i < 15:
            a("s_add_u32 s38, s38, 4096")
    a(f"""
    s_barrier
    s_waitcnt vmcnt(24)
    s_branch K2_F_TOP
    K2_F_NOLOAD:
    s_barrier
    s_waitcnt vmcnt(0)
    K2_F_TOP:
    {ST(1)}
    """)
    def merge(a0, a1, b0, b1):
        a(f"v_max_u32 v{a1}, v{a1}, v{b1}")
        a(f"v_med3_u32 v{a1}, v{a0}, v{b0}, v{a1}")
        a(f"v_max_u32 v{a0}, v{a0}, v{b0}")
    merge(8, 9, 10, 11); merge(12, 13, 14, 15); merge(8, 9, 12, 13)
    for sh in (8, 4, 2, 1):
        a(f"""
        s_nop 1
        v_mov_b32_dpp v10, v8 row_ror:{sh} {DPP}
        v_max_u32_dpp v9, v9, v9 row_ror:{sh} {DPP}
        v_med3_u32 v9, v8, v10, v9
        v_max_u32 v8, v8, v10
        """)
    a("s_nop 0")
    for k in range(4):
        a(f"v_readlane_b32 s{44+2*k}, v8, {16*k}")
        a(f"v_readlane_b32 s{45+2*k}, v9, {16*k}")
    def smerge(a0, a1, b0, b1):
        a(f"""
        s_max_u32 s{a1}, s{a1}, s{b1}
        s_min_u32 s{b1}, s{a0}, s{b0}
        s_max_u32 s{a1}, s{a1}, s{b1}
        s_max_u32 s{a0}, s{a0}, s{b0}
        """)
    smerge(44, 45, 46, 47); smerge(48, 49, 50, 51); smerge(44, 45, 48, 49)
    a(f"""
    {ST(2)}
    s_and_b32 s46, s44, 0x7ff
    s_and_b32 s47, s45, 0x7ff
    s_sub_u32 s46, 2047, s46           ; tokA
    s_sub_u32 s47, 2047, s47           ; tokB
    s_cmp_eq_u32 s9, 0
    s_cbranch_scc1 K2_F_BC
    v_and_b32 v4, 4, v0
    v_cmp_eq_u32 vcc, 0, v4
    v_mov_b32 v4, s47
    v_mov_b32 v5, s46
    v_cndmask_b32 v4, v4, v5, vcc
    v_lshlrev_b32 v4, 10, v4
    v_and_b32 v5, 48, v0               ; g*16 bytes
    v_add_u32 v4, v4, v5
    s_lshl_b32 s37, s4, 8
    s_add_u32 s37, s37, {hex(WS_CAND)}
    buffer_load_dwordx4 v[16:19], v4, s[12:15], s37 offen
    buffer_load_dwordx4 v[20:23], v4, s[12:15], s37 offen offset:64
    buffer_load_dwordx4 v[24:27], v4, s[12:15], s37 offen offset:128
    buffer_load_dwordx4 v[28:31], v4, s[12:15], s37 offen offset:192
    s_cmp_lg_u32 s4, 0
    s_cbranch_scc1 K2_F_NOBC
    K2_F_BC:
    s_or_b32 s48, s44, 0x8000
    s_or_b32 s49, s45, 0x8000
    v_mov_b32 v8, s48
    v_mov_b32 v9, s49
    v_mov_b32 v10, 1
    v_mov_b32 v11, 1
    v_mov_b32 v12, {FLAGS+16*FS_TOP}
    s_mov_b64 exec, 1
    ds_write_b128 v12, v[8:11]
    s_mov_b64 exec, -1
    s_cmp_eq_u32 s9, 0
    s_cbranch_scc1 K2_F_FIX
    K2_F_NOBC:
    v_lshrrev_b32 v5, 4, v0            ; g
    v_bfe_u32 v6, v0, 2, 2             ; r
    v_lshl_add_u32 v6, v5, 3, v6
    v_lshlrev_b32 v6, 5, v6
    v_and_b32 v7, 3, v0
    v_lshl_add_u32 v6, v7, 3, v6
    v_add_u32 v6, s39, v6
    s_waitcnt vmcnt(20)
    """)
    BW = 64
    for m in range(2):
        for ks in range(4):
            r = BW + 16 * m + 4 * ks
            a(f"ds_read_b64_tr_b16 {vr(r,2)}, v6 offset:{4096*m+1024*ks}")
            a(f"ds_read_b64_tr_b16 {vr(r+2,2)}, v6 offset:{4096*m+1024*ks+128}")
        if m == 0:
            a("s_waitcnt lgkmcnt(4)")
    flag_addr(1, "s4")
    a(f"""
    s_mov_b32 s40, 0x05040100
    s_mov_b32 s41, 0x07060302
    v_and_b32 v7, 31, v0
    v_lshlrev_b32 v7, 5, v7
    v_add_u32 v7, {FP}, v7
    v_lshrrev_b32 v2, 5, v0
    v_lshl_add_u32 v2, v2, 4, v7
    s_lshl_b32 s37, s4, 2
    v_add_u32 v2, s37, v2
    v_mov_b32 v12, {FLAGS+16*FS_FFN}
    v_mov_b32 v13, 1
    v_cmp_gt_u32 vcc, 32, v0
    s_waitcnt vmcnt(4)
    """)
    for p in range(8):
        a(f"v_perm_b32 v{48+2*p}, v{WD+2*p+1}, v{WD+2*p}, s40")
        a(f"v_perm_b32 v{49+2*p}, v{WD+2*p+1}, v{WD+2*p}, s41")
    a(f"""
    v_mov_b32 v32, 0
    v_mov_b32 v33, 0
    v_mov_b32 v34, 0
    v_mov_b32 v35, 0
    s_lshl_b32 s37, s8, 12
    s_add_u32 s37, s37, {hex(WS_PART)}
    v_lshlrev_b32 v3, 2, v3            ; (64f+lane)*16
    s_waitcnt lgkmcnt(0)
    """)
    a.stamp(3)
    for ks in range(4):
        a(f"s_waitcnt vmcnt({3-ks})")
        for m in range(2):
            acc = vr(96 + 4 * m, 4)
            a(f"v_mfma_f32_16x16x32_bf16 {acc}, {vr(16+4*ks,4)}, {vr(BW+16*m+4*ks,4)}, {acc if ks else 0}")
    a(f"""
    {ST(4)}
    s_nop 7
    v_cndmask_b32 v14, v100, v96, vcc
    ds_write_b32 v2, v14
    ds_write_b32 v1, v13 offset:{16*FS_FFN}
    K2_F_SP:
    ds_read_b128 v[8:11], v12
    ds_read_b128 v[16:19], v7
    ds_read_b128 v[20:23], v7 offset:16
    s_waitcnt lgkmcnt(0)
    """)
    spin_check(8, "K2_F_SP")
    a(f"""
    v_add_f32 v16, v16, v17
    v_add_f32 v18, v18, v19
    v_add_f32 v20, v20, v21
    v_add_f32 v22, v22, v23
    v_add_f32 v16, v16, v18
    v_add_f32 v20, v20, v22
    v_cvt_pk_bf16_f32 v17, v16, v20
    v_lshlrev_b32 v16, 16, v17         ; gate
    v_mul_f32 v18, {fh(-LOG2E)}, v16
    v_exp_f32 v18, v18
    v_and_b32 v20, 0xffff0000, v17     ; up
    v_add_f32 v18, 1.0, v18
    v_rcp_f32 v18, v18
    s_nop 0
    v_mul_f32 v16, v16, v18
    v_cvt_pk_bf16_f32 v16, v16, v16
    v_lshlrev_b32 v16, 16, v16
    v_mul_f32 v16, v16, v20
    s_nop 1
    v_mov_b32_dpp v17, v16 quad_perm:[1,0,3,2] {DPP}
    v_cvt_pk_bf16_f32 v16, v16, v17
    s_nop 0
    """)
    for i in range(16):
        a(f"v_readlane_b32 s{52+i}, v16, {2*i}")
    for p in range(8):
        for tok in range(2):
            for ch in range(2):
                a(f"v_dot2c_f32_bf16 v{32+2*tok+ch}, s{52+8*tok+p}, v{48+2*p+ch}")
    a(f"""
    s_nop 2
    v_min_u32 v32, -2, v32
    v_min_u32 v33, -2, v33
    v_min_u32 v34, -2, v34
    v_min_u32 v35, -2, v35
    buffer_store_dwordx4 v[32:35], v3, s[12:15], s37 offen sc1
    {ST(5)}
    s_cmp_lg_u32 s4, 0
    s_cbranch_scc1 K2_END
    K2_F_FIX:
    s_add_u32 s68, s12, {hex(WS_PART)}
    s_addc_u32 s69, s13, 0
    s_mov_b32 s70, {NSLICE*4096}
    s_mov_b32 s71, 0x00020000
    v_lshlrev_b32 v1, 12, v0
    v_add_u32 v2, 0x40000, v1
    s_lshl_b32 s37, s7, 4
    v_cmp_gt_u32 vcc, 32, v0
    v_mov_b32 v4, s47
    v_mov_b32 v5, s46
    v_cndmask_b32 v4, v4, v5, vcc      ; token l
    v_mov_b32 v6, s45
    v_mov_b32 v5, s44
    v_cndmask_b32 v6, v6, v5, vcc      ; key
    v_bfe_u32 v5, v0, 4, 1             ; ch
    v_lshrrev_b32 v7, 3, v4            ; tile
    v_lshrrev_b32 v8, 5, v4
    v_add_u32 v8, v8, v5               ; ch + t>>2
    v_add_u32 v9, 2, v8
    v_and_b32 v8, 3, v8
    v_and_b32 v9, 3, v9
    v_and_b32 v10, 7, v4
    v_lshlrev_b32 v10, 1, v10
    v_lshl_add_u32 v10, v7, 6, v10
    v_add_u32 v10, {XB}, v10
    v_lshl_add_u32 v40, v8, 4, v10
    v_lshl_add_u32 v41, v9, 4, v10     ; x addr
    v_lshrrev_b32 v7, 8, v4            ; nb
    v_lshlrev_b32 v42, 4, v7
    v_add_u32 v42, {FLAGS}, v42
    v_lshlrev_b32 v43, 12, v7
    v_lshl_add_u32 v43, v5, 11, v43
    v_bfe_u32 v8, v4, 2, 2
    v_lshl_add_u32 v43, v8, 8, v43
    v_bfe_u32 v8, v4, 4, 4
    v_lshl_add_u32 v43, v8, 4, v43
    v_and_b32 v8, 3, v4
    v_lshl_add_u32 v43, v8, 2, v43
    v_add_u32 v43, {DB}, v43           ; y addr
    v_lshlrev_b32 v44, 10, v4
    v_lshl_add_u32 v44, v5, 1, v44
    ; r_sel
    v_ashrrev_i32 v8, 31, v6
    v_not_b32 v8, v8
    v_or_b32 v8, 0x80000000, v8
    v_xor_b32 v6, v6, v8
    v_and_b32 v6, 0xffff0000, v6
    v_mul_f32 v6, {fh(-LOG2E)}, v6
    v_exp_f32 v6, v6
    v_lshlrev_b32 v8, 4, v5
    v_add_f32 v6, 1.0, v6
    v_rcp_f32 v6, v6
    s_waitcnt lgkmcnt(0)
    v_lshrrev_b32 v45, v8, s36
    v_cvt_pk_bf16_f32 v6, v6, v6
    v_lshlrev_b32 v45, 16, v45         ; D
    v_lshlrev_b32 v46, 16, v6          ; r_sel
    K2_F_POLL:
    buffer_load_dwordx4 v[8:11], v1, s[68:71], s37 offen sc1
    buffer_load_dwordx4 v[12:15], v2, s[68:71], s37 offen sc1
    s_waitcnt vmcnt(0)
    v_max3_u32 v16, v8, v9, v10
    v_max3_u32 v17, v11, v12, v13
    v_max3_u32 v16, v16, v14, v15
    v_max_u32 v16, v16, v17
    v_cmp_eq_u32 vcc, -1, v16
    s_cbranch_vccz K2_F_GOT
    s_sub_u32 s3, s3, 50
    s_cbranch_scc1 K2_END
    s_sleep 2
    s_branch K2_F_POLL
    K2_F_GOT:
    {ST(6)}
    v_pk_add_f32 v[8:9], v[8:9], v[12:13]
    v_pk_add_f32 v[10:11], v[10:11], v[14:15]
    K2_F_SPY:
    ds_read_b128 v[20:23], v42
    ds_read_u16 v24, v40
    ds_read_u16 v25, v41
    ds_read_b32 v26, v43
    ds_read_b32 v27, v43 offset:1024
    s_waitcnt lgkmcnt(0)
    """)
    spin_check(20, "K2_F_SPY")
    a(f"""
    v_permlane32_swap_b32 v8, v10
    v_permlane32_swap_b32 v9, v11
    v_lshlrev_b32 v24, 16, v24
    v_add_f32 v8, v8, v10
    v_add_f32 v9, v9, v11
    v_lshlrev_b32 v25, 16, v25
    v_add_f32 v26, v26, v27
    v_permlane16_swap_b32 v8, v9
    v_fma_f32 v26, v24, v45, v26       ; s
    v_add_f32 v8, v8, v9
    s_nop 1
    v_add_f32_dpp v8, v8, v8 row_ror:8 {DPP}
    s_nop 1
    v_add_f32_dpp v8, v8, v8 row_ror:4 {DPP}
    s_nop 1
    v_add_f32_dpp v8, v8, v8 row_ror:2 {DPP}
    s_nop 1
    v_add_f32_dpp v8, v8, v8 row_ror:1 {DPP}
    v_cvt_pk_bf16_f32 v8, v8, v8
    v_lshlrev_b32 v8, 16, v8
    v_mul_f32 v8, v8, v46
    v_cvt_pk_bf16_f32 v8, v8, v8
    v_lshlrev_b32 v8, 16, v8
    v_add_f32 v8, v8, v24
    v_cvt_pk_bf16_f32 v8, v8, v8
    v_lshlrev_b32 v8, 16, v8
    v_mul_f32 v9, {fh(-LOG2E)}, v8
    v_exp_f32 v9, v9
    s_mov_b32 s40, 0x00010001
    v_add_f32 v9, 1.0, v9
    v_rcp_f32 v9, v9
    s_mov_b32 s41, 0x00010001
    v_mul_f32 v8, v8, v9
    v_fma_f32 v8, v8, v26, v25
    v_cvt_pk_bf16_f32 v8, v8, v8
    s_mov_b64 exec, s[40:41]
    buffer_store_short v8, v44, s[28:31], s35 offen
    K2_END:
    """)
    a.stamp_dump(WS_STAMP + 512 * 8 * 32, 12, 256)
    a("s_endpgm")
    return dict(vgpr=168, sgpr=(102 if a.stamps else 80), lds=K2_LDS, grid=256, block=768)
```

```python
WS_XT   = 0
WS_KG   = 4 << 20
KG_STRIDE = 8320
KG_H    = 4160
WS_KEYS = 9 << 20
WS_CAND = 10 << 20
WS_PART = 12 << 20
NSLICE  = 86
WS_STAMP = 14 << 20
WS_SIZE = 16 << 20
LOG2E = 1.4426950408889634
INV2PI = 0.15915494309189535
F_EPOCH = 0
F_STATS = 0x10000
F_KEYS  = 0x20000
F_PART  = 0x40000
F_XX    = 0x100000
F_XFLG  = 0x30000
F2_XX   = 0x200000
```

```python
import sys
sys.path.insert(0, "gen")
from asmlib import *
from k1 import gen_k1
from k2 import gen_k2
def build(out, body):
    a = Asm()
    a('.amdgcn_target "amdgcn-amd-amdhsa--gfx950"\n.text')
    ks = []
    a(".globl ke_kernel\n.p2align 8\n.type ke_kernel,@function\nke_kernel:\n" + body + "\ns_endpgm")
    ks.append(("ke_kernel", dict(vgpr=64, sgpr=40, lds=65536, grid=256, block=256)))
    ks.append(("k1_kernel", gen_k1(a, "k1_kernel")))
    ks.append(("k2_kernel", gen_k2(a, "k2_kernel")))
    hdr = open("recurrent_scan__ssm_conv_s4d__moe_arch_mod__prompt.s.ref").read().split("; Override")[0]
    for n, k in ks:
        hdr += f"; @launch kernel={n} grid=({k['grid']},1,1) block=({k['block']},1,1) lds={k['lds']}\n"
    txt = hdr + a.text() + '.section .rodata,"a"\n'
    for n, k in ks:
        txt += kernel_desc(n, k["vgpr"], k["sgpr"])
    open(out, "w").write(txt)
def rd(argoff, nbytes, base, n, sh):
    b = f"s_load_dwordx2 s[8:9], s[0:1], {argoff}\ns_mov_b32 s10, {hex(nbytes)}\ns_mov_b32 s11, 0x00020000\n"
    b += f"s_lshl_b32 s30, s2, {sh}\ns_add_u32 s30, s30, {hex(base)}\nv_lshlrev_b32 v1, 4, v0\nv_add_u32 v1, s30, v1\ns_waitcnt lgkmcnt(0)\n"
    for i in range(n):
        b += f"buffer_load_dwordx4 v[{4+4*i}:{7+4*i}], v1, s[8:11], 0 offen\nv_add_u32 v1, 0x1000, v1\n"
    b += "s_waitcnt vmcnt(0)\n"
    return b
build("pr_empty.s", "s_nop 0")
build("pr_bx2.s", rd(56, 0x200000, 0, 2, 13))
build("pr_ws8lo.s", rd(112, 0x10000000, 0x2000000, 8, 15))
build("pr_ws8hi.s", rd(112, 0x10000000, 0xf000000, 8, 15))
spin = "s_mov_b32 s31, 0\nL_sp:\n" + "".join("v_add_u32 v2, v0, v2\n" for _ in range(16)) + "s_add_u32 s31, s31, 1\ns_cmp_lt_u32 s31, 50\ns_cbranch_scc1 L_sp\n"
build("pr_spin.s", spin)
def spinN(n):
    return "s_mov_b32 s31, 0\nL_sp:\n" + "".join("v_add_u32 v2, v0, v2\n" for _ in range(16)) + f"s_add_u32 s31, s31, 1\ns_cmp_lt_u32 s31, {n}\ns_cbranch_scc1 L_sp\n"
build("pr_spin15.s", spinN(15))
build("pr_spin30.s", spinN(30))
build("pr_spin100.s", spinN(100))
build("pr_spin200.s", spinN(200))
clk = "s_memtime s[20:21]\ns_memrealtime s[22:23]\ns_load_dwordx2 s[8:9], s[0:1], 104\ns_mov_b32 s10, 256\ns_mov_b32 s11, 0x00020000\ns_waitcnt lgkmcnt(0)\n" + spinN(100) + \
  "s_memtime s[24:25]\ns_memrealtime s[26:27]\ns_waitcnt lgkmcnt(0)\ns_sub_u32 s24, s24, s20\ns_sub_u32 s26, s26, s22\nv_mov_b32 v4, s24\nv_mov_b32 v5, s26\ns_lshl_b32 s28, s2, 3\nv_mov_b32 v6, s28\ns_mov_b64 exec, 1\nbuffer_store_dwordx2 v[4:5], v6, s[8:11], 0 offen\n"
build("pr_clk.s", clk)
build("pr_ws16.s", rd(112, 0x10000000, 0x2000000, 14, 16))
```

```python
class Asm:
    def __init__(self):
        self.lines = []
        self._uid = 0
    def __call__(self, s):
        for ln in s.strip("\n").split("\n"):
            ln = ln.strip()
            if not ln:
                continue
            if ln.endswith(":") or ln.startswith("."):
                self.lines.append(ln)
            else:
                self.lines.append("    " + ln)
    def label(self, name):
        self.lines.append(name + ":")
    def uid(self, p="L"):
        self._uid += 1
        return f"{p}_{self._uid}"
    stamps = False
    def stamp(self, i):
        if self.stamps:
            self(f"s_memrealtime s[{80+2*i}:{81+2*i}]")
    def stamp_init(self):
        if self.stamps:
            self("s_memrealtime s[80:81]")
            self("v_readfirstlane_b32 s79, v0")
            for i in range(1, 8):
                self(f"s_mov_b32 s{80+2*i}, 0")
    def end(self, label):
        if self.stamps:
            self(f"s_branch {label}")
        else:
            self("s_endpgm")
    def stamp_dump(self, base, nwaves, grid):
        if self.stamps:
            self(f"""
            s_cmp_ge_u32 s2, {grid}
            s_cbranch_scc1 {self.uid('SD')}
            s_waitcnt vmcnt(0) lgkmcnt(0)
            s_memrealtime s[94:95]
            s_load_dwordx2 s[96:97], s[0:1], 112
            s_mov_b32 s98, 0x1000000
            s_mov_b32 s99, 0x00020000
            s_lshr_b32 s79, s79, 6
            s_mul_i32 s78, s2, {nwaves}
            s_add_u32 s78, s78, s79
            s_lshl_b32 s78, s78, 5
            s_add_u32 s78, s78, {hex(base)}
            s_mov_b64 exec, 1
            s_waitcnt lgkmcnt(0)
            v_mov_b32 v0, 0
            v_mov_b32 v4, s80
            v_mov_b32 v5, s82
            v_mov_b32 v6, s84
            v_mov_b32 v7, s86
            v_mov_b32 v8, s88
            v_mov_b32 v9, s90
            v_mov_b32 v10, s92
            v_mov_b32 v11, s94
            buffer_store_dwordx4 v[4:7], v0, s[96:99], s78 offen
            buffer_store_dwordx4 v[8:11], v0, s[96:99], s78 offen offset:16
            {self.dbg_atomics()}
            SD_{self._uid}:
            """)
    dbgst = False
    def dbg_atomics(self):
        if not self.dbgst:
            return ""
        t = """
            s_load_dwordx2 s[96:97], s[0:1], 104
            s_mov_b32 s98, 256
            s_cmp_lt_u32 s79, 4
            s_cselect_b32 s78, 0, 32
            v_not_b32 v4, v4
            s_waitcnt lgkmcnt(0) vmcnt(0)
        """
        for i in range(8):
            t += f"buffer_atomic_umax v{4+i}, v0, s[96:99], s78 offen offset:{4*i}\n"
        return t
    def text(self):
        return "\n".join(self.lines) + "\n"
    def srd(self, d, b, nbytes, add=0):
        if add:
            self(f"s_add_u32 s{d}, s{b}, {hex(add)}")
            self(f"s_addc_u32 s{d+1}, s{b+1}, 0")
        else:
            if d != b:
                self(f"s_mov_b32 s{d}, s{b}")
                self(f"s_mov_b32 s{d+1}, s{b+1}")
        self(f"s_mov_b32 s{d+2}, {hex(nbytes)}")
        self(f"s_mov_b32 s{d+3}, 0x00020000")

def vr(a, n=1):
    return f"v{a}" if n == 1 else f"v[{a}:{a+n-1}]"
def sr(a, n=1):
    return f"s{a}" if n == 1 else f"s[{a}:{a+n-1}]"
DPP = "row_mask:0xf bank_mask:0xf"

import struct
def f2u(x):
    return struct.unpack("<I", struct.pack("<f", x))[0]
def fh(x):
    return hex(f2u(x))

def kernel_desc(name, vgpr, sgpr, accum=None):
    accum = accum or ((vgpr + 3) // 4 * 4)
    return f""".p2align 6
.amdhsa_kernel {name}
  .amdhsa_next_free_vgpr {vgpr}
  .amdhsa_next_free_sgpr {sgpr}
  .amdhsa_accum_offset {accum}
  .amdhsa_group_segment_fixed_size 0
  .amdhsa_kernarg_size 120
  .amdhsa_user_sgpr_count 2
  .amdhsa_user_sgpr_kernarg_segment_ptr 1
  .amdhsa_system_sgpr_workgroup_id_x 1
.end_amdhsa_kernel
"""
```

```python
import sys
sys.path.insert(0, "gen")
from asmlib import *
from layout import *

NAME = "recurrent_scan__ssm_conv_s4d__moe_arch_mod__prompt_kernel"
US = 4608
KI = 2 * US
KCS = 4160
ROWS = 528
KR = KI + 8 * KCS
KRS = 64 * ROWS
FW = KR + 2 * KRS
XTL = FW + 32768
FP = XTL + 8192
FLAGS = FP + 1024
NSET = 17
DUM = FLAGS + 16 * NSET
LDS = DUM + 256 + 16 * NSET + 16
FS_U, FS_KROW, FS_KIMG, FS_FFN, FS_TOP, FS_KEY, FS_PACE = 8, 10, 11, 12, 13, 14, 15
SPIN_BUDGET = 100000

S_X, S_LA, S_AI, S_CR, S_CI, S_LDT, S_DSK = 32, 34, 36, 38, 40, 42, 44
S_WR, S_WG, S_WU, S_WD, S_OUT = 48, 50, 52, 54, 56

def gen(out, stamps=False, opt=None):
    opt = opt or {}
    a = Asm(); a.stamps = stamps; a.dbgst = bool(opt.get('dbg', 0))
    ST = lambda i: (f"s_memrealtime s[{80+2*i}:{81+2*i}]" if stamps else "")
    a('.amdgcn_target "amdgcn-amd-amdhsa--gfx950"\n.text')
    a(f".globl {NAME}\n.p2align 8\n.type {NAME},@function\n{NAME}:")
    a.stamp_init()
    a(f"""
    s_cmp_ge_u32 s2, 256
    s_cbranch_scc1 L_END
    s_load_dwordx2 s[12:13], s[0:1], 112
    s_load_dwordx16 s[32:47], s[0:1], 0
    s_load_dwordx8 s[48:55], s[0:1], 64
    s_load_dwordx2 s[56:57], s[0:1], 96
    v_lshrrev_b32 v1, 6, v0
    v_and_b32 v0, 63, v0
    v_readfirstlane_b32 s4, v1
    s_mov_b32 s14, {hex(WS_SIZE)}
    s_mov_b32 s15, 0x00020000
    s_mov_b32 s18, 0x200000
    s_mov_b32 s19, 0x00020000
    s_mov_b32 s23, 0x00020000
    s_mov_b32 s27, 0x00020000
    s_mov_b32 s31, 0x00020000
    s_and_b32 s5, s2, 7
    s_lshr_b32 s6, s2, 3
    s_lshl_b32 s7, s5, 5
    s_add_u32 s7, s7, s6
    s_mov_b32 s3, {SPIN_BUDGET}
    s_mov_b32 s9, 0xffff0000
    v_mov_b32 v164, 0
    s_cmp_lt_u32 s4, 4
    s_cbranch_scc1 L_M
    s_cmp_ge_u32 s4, 8
    s_cbranch_scc1 L_EF
    """)
    def retry(lab, cost=1, sleep=1):
        ok = a.uid("L_OK")
        a(f"""
        s_cbranch_vccz {ok}
        s_sub_u32 s3, s3, {cost}
        s_cbranch_scc1 L_END
        s_sleep {sleep}
        s_branch {lab}
        {ok}:
        """)
    def spin_quad(t, lab):
        a(f"""
        v_min3_u32 v{t}, v{t}, v{t+1}, v{t+2}
        v_min_u32 v{t}, v{t}, v{t+3}
        v_cmp_eq_u32 vcc, 0, v{t}
        """)
        retry(lab)
    def flag_addr(dst, widx, tmp_s):
        a(f"""
        s_lshl_b32 s{tmp_s}, {widx}, 2
        s_add_u32 s{tmp_s}, s{tmp_s}, {FLAGS}
        v_lshlrev_b32 v{dst}, 2, v0
        v_add_u32 v{dst}, {DUM}, v{dst}
        v_writelane_b32 v{dst}, s{tmp_s}, 0
        """)
    def tag_calc():
        a("""
        s_mul_i32 s8, s8, 0x9E3779B1
        s_add_u32 s8, s8, 0x7F4A7C15
        """)

    a(f"""
    s_sub_u32 s4, s4, 4
    v_and_b32 v2, 31, v0
    v_lshlrev_b32 v2, 4, v2            ; (lane&31)*16
    v_lshrrev_b32 v3, 5, v0
    v_lshl_add_u32 v3, v3, 10, v2      ; + half*1024
    s_lshl_b32 s10, s2, 13
    s_lshl_b32 s11, s4, 11
    s_add_u32 s10, s10, s11
    s_mov_b32 s22, 1024
    s_waitcnt lgkmcnt(0)
    s_mov_b32 s16, s{S_X}
    s_mov_b32 s17, s{S_X+1}
    s_load_dword s8, s[12:13], {F_EPOCH}
    s_mov_b32 s20, s{S_WR}
    s_mov_b32 s21, s{S_WR+1}
    buffer_load_dwordx4 v[8:11], v3, s[16:19], s10 offen
    buffer_load_dwordx4 v[12:15], v3, s[16:19], s10 offen offset:512
    buffer_load_dwordx4 v[16:19], v2, s[20:23], 0 offen
    buffer_load_dwordx4 v[20:23], v2, s[20:23], 0 offen offset:512
    s_lshl_b32 s24, s4, 6
    v_add_u32 v4, s24, v0              ; idx 0..255
    v_lshrrev_b32 v5, 5, v4
    v_mul_u32_u24 v5, {US}, v5
    v_add_u32 v5, v5, v2               ; U pads
    v_subrev_u32 v6, 64, v4
    v_lshrrev_b32 v7, 2, v6
    v_mul_u32_u24 v7, {KCS}, v7
    v_and_b32 v6, 3, v6
    v_lshl_add_u32 v7, v6, 4, v7
    v_add_u32 v7, {KI+4096}, v7        ; K tails
    v_subrev_u32 v6, 96, v4
    v_min_u32 v6, {NSET}, v6
    v_lshlrev_b32 v6, 4, v6
    v_add_u32 v6, {FLAGS}, v6
    v_cmp_gt_u32 vcc, 96, v4
    v_mov_b32 v24, 0
    v_mov_b32 v25, 0
    v_cndmask_b32 v6, v6, v7, vcc
    v_cmp_gt_u32 vcc, 64, v4
    v_mov_b32 v26, 0
    v_mov_b32 v27, 0
    v_cndmask_b32 v6, v6, v5, vcc
    ds_write_b128 v6, v[24:27]
    s_lshl_b32 s24, s2, 3
    s_lshl_b32 s25, s4, 1
    s_add_u32 s24, s24, s25            ; tok0
    s_lshr_b32 s25, s24, 8
    s_lshl_b32 s25, s25, 11
    s_and_b32 s26, s4, 1
    s_lshl_b32 s26, s26, 10
    s_add_u32 s25, s25, s26
    s_bfe_u32 s26, s24, 0x60002
    s_lshl_b32 s26, s26, 4
    s_add_u32 s25, s25, s26
    s_add_u32 s25, s25, {hex(F_STATS)}
    s_mov_b32 s28, 0x3f803f80
    v_mov_b32 v28, {fh(1.0/512)}
    s_waitcnt lgkmcnt(0)
    s_barrier
    """)
    tag_calc()
    a(f"""
    v_mov_b32 v35, s8
    v_mov_b32 v34, 0
    s_waitcnt vmcnt(2)
    {ST(1)}
    """)
    for i in range(8):
        a(f"v_dot2c_f32_bf16 v24, s28, v{8+i}")
        a(f"v_dot2c_f32_bf16 v25, v{8+i}, v{8+i}")
    F = 40
    def unpack(i):
        return [f"v_lshlrev_b32 v{F+2*i}, 16, v{8+i}", f"v_and_b32 v{F+2*i+1}, s9, v{8+i}"]
    up = [l for i in range(8) for l in unpack(i)]
    def fill(n):
        for _ in range(n):
            a(up.pop(0) if up else "s_nop 0")
    fill(3)
    a("v_permlane16_swap_b32 v24, v25")
    fill(1)
    a("v_add_f32 v24, v24, v25")
    for sh in (8, 4, 2, 1):
        fill(2)
        a(f"v_add_f32_dpp v24, v24, v24 row_ror:{sh} {DPP}")
    a("v_mov_b32 v25, v24")
    fill(2)
    a("v_permlane16_swap_b32 v24, v25")
    fill(2)
    assert not up
    a(f"""
    v_mul_f32 v24, v24, v28            ; mean
    v_mul_f32 v25, v25, v28            ; E[x^2]
    v_fma_f32 v26, -v24, v24, v25      ; var
    v_mul_f32 v25, {fh(1.0/256)}, v25
    v_cmp_lt_f32 vcc, v26, v25
    s_cbranch_vccnz L_EL_SLOWVAR
    L_EL_VAROK:
    v_cvt_pk_bf16_f32 v27, v24, v26
    v_and_b32 v26, s9, v27
    v_add_f32 v26, {fh(1e-5)}, v26
    v_lshlrev_b32 v30, 16, v27         ; m
    v_cvt_pk_bf16_f32 v26, v26, v26
    v_lshlrev_b32 v26, 16, v26
    v_sqrt_f32 v26, v26
    v_mov_b32 v36, 0
    v_cvt_pk_bf16_f32 v32, v30, v26    ; m | sd<<16
    v_and_b32 v26, s9, v32
    v_readlane_b32 s26, v32, 32
    v_rcp_f32 v38, v26
    s_mov_b64 exec, 1
    v_mov_b32 v33, s26
    buffer_store_dwordx4 v[32:35], v36, s[12:15], s25 offen sc1
    s_mov_b64 exec, -1
    {ST(2)}
    """)
    for i in range(8):
        a(f"v_pk_add_f32 {vr(F+2*i,2)}, {vr(F+2*i,2)}, v[30:31] op_sel_hi:[1,0] neg_lo:[0,1] neg_hi:[0,1]")
    for i in range(8):
        a(f"v_cvt_pk_bf16_f32 v{F+2*i+1}, v{F+2*i}, v{F+2*i+1}")
    for i in range(8):
        a(f"v_lshlrev_b32 v{F+2*i}, 16, v{F+2*i+1}")
        a(f"v_and_b32 v{F+2*i+1}, s9, v{F+2*i+1}")
    for i in range(8):
        a(f"v_pk_mul_f32 {vr(F+2*i,2)}, {vr(F+2*i,2)}, v[38:39] op_sel_hi:[1,0]")
    for i in range(8):
        a(f"v_cvt_pk_bf16_f32 v{8+i}, v{F+2*i}, v{F+2*i+1}")
    a("""
    v_mov_b32 v24, 0
    v_mov_b32 v25, 0
    s_waitcnt vmcnt(1)
    """)
    for i in range(4):
        a(f"v_dot2c_f32_bf16 v24, v{8+2*i}, v{16+2*i}")
        a(f"v_dot2c_f32_bf16 v25, v{9+2*i}, v{17+2*i}")
    a(f"""
    v_lshrrev_b32 v26, 5, v0
    s_sub_u32 s26, 2047, s24
    v_sub_u32 v26, s26, v26            ; 2047 - tok
    v_add_f32 v24, v24, v25
    v_mov_b32 v27, {FLAGS+16*FS_KEY}
    v_mov_b32 v29, 1
    v_add_f32_dpp v24, v24, v24 row_ror:8 {DPP}
    s_nop 1
    v_add_f32_dpp v24, v24, v24 row_ror:4 {DPP}
    s_nop 1
    v_add_f32_dpp v24, v24, v24 row_ror:2 {DPP}
    s_nop 1
    v_add_f32_dpp v24, v24, v24 row_ror:1 {DPP}
    s_mov_b32 s28, 0x80000000
    s_mov_b32 s29, 0x80000000
    v_add_f32_dpp v24, v24, v24 row_bcast:15 row_mask:0xa bank_mask:0xf
    v_cvt_pk_bf16_f32 v24, v24, v24
    v_ashrrev_i32 v25, 31, v24
    v_or_b32 v25, 0x80000000, v25
    v_xor_b32 v24, v24, v25
    v_and_or_b32 v24, v24, s9, v26
    s_mov_b64 exec, s[28:29]
    ds_max_rtn_u32 v25, v27, v24
    s_waitcnt lgkmcnt(0)
    v_min_u32 v25, v25, v24
    ds_max_u32 v27, v25 offset:4
    s_mov_b64 exec, 1
    ds_add_rtn_u32 v25, v27, v29 offset:8
    ds_read_b64 v[32:33], v27
    s_lshl_b32 s25, s2, 4
    s_add_u32 s25, s25, {hex(F_KEYS)}
    v_mov_b32 v34, s8
    s_waitcnt lgkmcnt(0)
    v_cmp_eq_u32 vcc, 3, v25
    s_cbranch_vccz L_EL_NOKEY
    buffer_store_dwordx4 v[32:35], v36, s[12:15], s25 offen sc1
    L_EL_NOKEY:
    s_mov_b64 exec, -1
    {ST(3)}
    s_mov_b32 s60, 0
    s_branch L_E_POLL0
    L_EL_SLOWVAR:
    v_mov_b32 v26, 0
    """)
    for i in range(16):
        a(f"v_sub_f32 v27, v{F+i}, v24")
        a(f"v_fmac_f32 v26, v27, v27")
    for sh in (8, 4, 2, 1):
        a("s_nop 1")
        a(f"v_add_f32_dpp v26, v26, v26 row_ror:{sh} {DPP}")
    a("""
    v_mov_b32 v27, v26
    s_nop 1
    v_permlane16_swap_b32 v26, v27
    s_nop 0
    v_add_f32 v26, v26, v27
    v_mul_f32 v26, v26, v28
    s_branch L_EL_VAROK
    """)

    a("L_EF:")
    a(f"""
    s_sub_u32 s4, s4, 4                ; e
    s_sub_u32 s61, s4, 4               ; f
    v_lshrrev_b32 v2, 3, v0
    v_lshlrev_b32 v2, 10, v2
    v_and_b32 v3, 7, v0
    v_lshl_add_u32 v2, v3, 4, v2
    s_lshl_b32 s10, s6, 16
    s_lshl_b32 s11, s61, 14
    s_add_u32 s10, s10, s11
    s_lshl_b32 s11, s5, 7
    s_add_u32 s10, s10, s11
    s_add_u32 s11, s10, 8192
    s_lshl_b32 s62, s61, 11
    s_add_u32 s62, s62, {XTL}
    s_add_u32 s24, s62, 1024
    s_mov_b32 m0, s62
    s_waitcnt lgkmcnt(0)
    s_mov_b32 s16, s{S_X}
    s_mov_b32 s17, s{S_X+1}
    s_load_dword s8, s[12:13], {F_EPOCH}
    buffer_load_dwordx4 v2, s[16:19], s10 offen lds
    s_mov_b32 m0, s24
    s_mul_i32 s63, s5, 11
    buffer_load_dwordx4 v2, s[16:19], s11 offen lds
    s_add_u32 s63, s63, s6             ; slice
    s_cmp_lt_u32 s6, 11
    s_cselect_b32 s63, s63, 1000
    s_cmp_lt_u32 s63, {NSLICE}
    s_cselect_b32 s60, 1, 0
    v_and_b32 v3, 3, v0
    v_lshlrev_b32 v4, 9, v3
    v_and_b32 v5, 60, v0
    v_add_u32 v4, v4, v5
    v_add_u32 v4, s62, v4
    v_lshlrev_b32 v5, 12, v5
    v_lshl_add_u32 v5, v3, 4, v5
    s_lshl_b32 s24, s5, 19
    s_lshr_b32 s25, s6, 2
    s_lshl_b32 s25, s25, 11
    s_add_u32 s24, s24, s25
    s_and_b32 s25, s6, 3
    s_lshl_b32 s25, s25, 8
    s_add_u32 s24, s24, s25
    s_lshl_b32 s25, s61, 6
    s_add_u32 s24, s24, s25
    s_add_u32 s24, s24, {hex(F_XX)}
    s_add_u32 s25, s24, 0x40000
    s_waitcnt lgkmcnt(0)
    s_barrier
    """)
    tag_calc()
    for i in range(4):
        a(f"v_mov_b32 v{10+4*i}, s8")
        a(f"v_mov_b32 v{11+4*i}, s8")
    a(f"""
    s_waitcnt vmcnt(0)
    {ST(1)}
    ds_read2_b32 v[8:9], v4 offset0:0 offset1:32
    ds_read2_b32 v[12:13], v4 offset0:64 offset1:96
    ds_read2_b32 v[16:17], v4 offset0:16 offset1:48
    ds_read2_b32 v[20:21], v4 offset0:80 offset1:112
    s_waitcnt lgkmcnt(3)
    buffer_store_dwordx4 v[8:11], v5, s[12:15], s24 offen sc1
    s_waitcnt lgkmcnt(2)
    buffer_store_dwordx4 v[12:15], v5, s[12:15], s24 offen offset:1024 sc1
    s_waitcnt lgkmcnt(1)
    buffer_store_dwordx4 v[16:19], v5, s[12:15], s25 offen sc1
    s_waitcnt lgkmcnt(0)
    buffer_store_dwordx4 v[20:23], v5, s[12:15], s25 offen offset:1024 sc1
    {ST(2)}
    s_cmp_eq_u32 s60, 0
    s_cbranch_scc1 L_EF_NOW
    s_mov_b32 s20, s{S_WG}
    s_mov_b32 s21, s{S_WG+1}
    s_mov_b32 s22, {512*2752}
    s_mov_b32 s24, s{S_WU}
    s_mov_b32 s25, s{S_WU+1}
    s_mov_b32 s26, {512*2752}
    s_mov_b32 s28, s{S_WD}
    s_mov_b32 s29, s{S_WD+1}
    s_mov_b32 s30, {1376*1024}
    s_lshl_b32 s10, s61, 7
    v_lshrrev_b32 v2, 1, v0
    v_add_u32 v2, s10, v2
    v_mul_u32_u24 v2, 2752, v2
    v_and_b32 v3, 1, v0
    v_lshl_add_u32 v2, v3, 4, v2
    s_lshl_b32 s10, s63, 5
    s_lshl_b32 s64, s61, 13
    s_add_u32 s64, s64, {FW}
    """)
    for i in range(4):
        a(f"""
        s_add_u32 s11, s64, {1024*i}
        s_mov_b32 m0, s11
        s_add_u32 s11, s11, 4096
        buffer_load_dwordx4 v2, s[20:23], s10 offen lds
        s_mov_b32 m0, s11
        s_nop 0
        buffer_load_dwordx4 v2, s[24:27], s10 offen lds
        s_add_u32 s10, s10, {32*2752}
        """)
    WD, WP, BW = 96, 112, 128
    a(f"""
    s_lshl_b32 s10, s61, 8
    v_lshlrev_b32 v160, 2, v0
    v_add_u32 v160, s10, v160
    s_lshl_b32 s10, s63, 14
    """)
    for i in range(16):
        a(f"buffer_load_dword v{WD+i}, v160, s[28:31], s10 offen offset:{1024*(i%4)}")
        if i % 4 == 3 and i < 15:
            a("s_add_u32 s10, s10, 4096")
    a(f"""
    v_lshrrev_b32 v5, 4, v0
    v_bfe_u32 v6, v0, 2, 2
    v_lshl_add_u32 v6, v5, 3, v6
    v_lshlrev_b32 v6, 5, v6
    v_and_b32 v7, 3, v0
    v_lshl_add_u32 v6, v7, 3, v6
    v_add_u32 v6, s64, v6
    s_mov_b32 s10, 0x05040100
    s_mov_b32 s11, 0x07060302
    s_waitcnt vmcnt(16)
    """)
    for m in range(2):
        for ks in range(4):
            r = BW + 16 * m + 4 * ks
            a(f"ds_read_b64_tr_b16 {vr(r,2)}, v6 offset:{4096*m+1024*ks}")
            a(f"ds_read_b64_tr_b16 {vr(r+2,2)}, v6 offset:{4096*m+1024*ks+128}")
        if m == 0:
            a("s_waitcnt lgkmcnt(4)")
    a("s_waitcnt vmcnt(0)")
    for p in range(8):
        a(f"v_perm_b32 v{WP+2*p}, v{WD+2*p+1}, v{WD+2*p}, s10")
        a(f"v_perm_b32 v{WP+2*p+1}, v{WD+2*p+1}, v{WD+2*p}, s11")
    a(f"""
    s_branch L_EF_KEYS
    L_EF_NOW:
    s_cmp_lg_u32 s61, 0
    s_cbranch_scc1 L_E_POLL0
    L_EF_KEYS:
    v_lshlrev_b32 v2, 4, v0
    s_mov_b32 s10, {hex(F_KEYS)}
    L_EF_KPOLL:
    buffer_load_dwordx4 v[8:11], v2, s[12:15], s10 offen sc1
    buffer_load_dwordx4 v[12:15], v2, s[12:15], s10 offen offset:1024 sc1
    buffer_load_dwordx4 v[16:19], v2, s[12:15], s10 offen offset:2048 sc1
    buffer_load_dwordx4 v[20:23], v2, s[12:15], s10 offen offset:3072 sc1
    s_waitcnt vmcnt(0)
    v_xor_b32 v10, s8, v10
    v_xor_b32 v14, s8, v14
    v_xor_b32 v18, s8, v18
    v_xor_b32 v22, s8, v22
    v_or3_b32 v10, v10, v14, v18
    v_or_b32 v10, v10, v22
    v_cmp_ne_u32 vcc, 0, v10
    """)
    retry("L_EF_KPOLL", cost=20, sleep=2)
    a(ST(3))
    def merge(a0, a1, b0, b1):
        a(f"v_max_u32 v{a1}, v{a1}, v{b1}")
        a(f"v_med3_u32 v{a1}, v{a0}, v{b0}, v{a1}")
        a(f"v_max_u32 v{a0}, v{a0}, v{b0}")
    merge(8, 9, 12, 13); merge(16, 17, 20, 21); merge(8, 9, 16, 17)
    for sh in (8, 4, 2, 1):
        a(f"""
        s_nop 1
        v_mov_b32_dpp v10, v8 row_ror:{sh} {DPP}
        v_max_u32_dpp v9, v9, v9 row_ror:{sh} {DPP}
        v_med3_u32 v9, v8, v10, v9
        v_max_u32 v8, v8, v10
        """)
    a("s_nop 0")
    for k in range(4):
        a(f"v_readlane_b32 s{66+2*k}, v8, {16*k}")
        a(f"v_readlane_b32 s{67+2*k}, v9, {16*k}")
    def smerge(a0, a1, b0, b1):
        a(f"""
        s_max_u32 s{a1}, s{a1}, s{b1}
        s_min_u32 s{b1}, s{a0}, s{b0}
        s_max_u32 s{a1}, s{a1}, s{b1}
        s_max_u32 s{a0}, s{a0}, s{b0}
        """)
    smerge(66, 67, 68, 69); smerge(70, 71, 72, 73); smerge(66, 67, 70, 71)
    a(f"""
    v_cmp_gt_u32 vcc, 32, v0
    v_mov_b32 v162, s67
    v_mov_b32 v3, s66
    v_cndmask_b32 v162, v162, v3, vcc
    v_and_b32 v161, 0x7ff, v162
    v_sub_u32 v161, 2047, v161
    s_cmp_eq_u32 s60, 0
    s_cbranch_scc1 L_EF_BC
    v_and_b32 v3, 31, v0
    v_lshlrev_b32 v3, 3, v3
    v_lshl_add_u32 v163, v161, 10, v3
    s_lshl_b32 s65, s61, 8
    buffer_load_dwordx2 v[88:89], v163, s[16:19], s65 offen
    v_lshrrev_b32 v4, 8, v161
    v_lshlrev_b32 v4, 11, v4
    v_bfe_u32 v5, v161, 1, 1
    v_lshl_add_u32 v4, v5, 10, v4
    v_bfe_u32 v5, v161, 2, 6
    v_lshl_add_u32 v164, v5, 4, v4
    s_cmp_lg_u32 s61, 0
    s_cbranch_scc1 L_E_POLL0
    L_EF_BC:
    s_or_b32 s10, s66, 0x8000
    s_or_b32 s11, s67, 0x8000
    v_mov_b32 v8, s10
    v_mov_b32 v9, s11
    v_mov_b32 v10, 1
    v_mov_b32 v11, 1
    v_mov_b32 v12, {FLAGS+16*FS_TOP}
    s_mov_b64 exec, 1
    ds_write_b128 v12, v[8:11]
    s_mov_b64 exec, -1
    """)

    vL16, vFl, vU, vOne = 1, 2, 3, 4
    a(f"""
    L_E_POLL0:
    v_lshlrev_b32 v{vL16}, 4, v0
    s_lshl_b32 s10, s4, 11
    s_add_u32 s11, s10, {hex(F_STATS)}
    s_lshl_b32 s24, s7, 14
    s_add_u32 s10, s10, s24
    s_add_u32 s10, s10, {hex(F_XX)}
    s_mov_b32 s25, {hex(F_STATS)}
    s_lshl_b32 s58, s7, 2
    s_load_dword s59, s[{S_DSK}:{S_DSK+1}], s58
    L_E_POLL:
    buffer_load_dwordx4 v[8:11], v{vL16}, s[12:15], s10 offen sc1
    buffer_load_dwordx4 v[12:15], v{vL16}, s[12:15], s10 offen offset:1024 sc1
    buffer_load_dwordx4 v[16:19], v{vL16}, s[12:15], s11 offen sc1
    buffer_load_dwordx4 v[20:23], v{vL16}, s[12:15], s11 offen offset:1024 sc1
    v_mov_b32 v95, s8
    s_cmp_eq_u32 s60, 0
    s_cbranch_scc1 L_E_NOSEL
    buffer_load_dwordx4 v[92:95], v164, s[12:15], s25 offen sc1
    L_E_NOSEL:
    """)
    flag_addr(vFl, "s4", 24)
    a(f"""
    s_lshl_b32 s24, s4, 9
    s_add_u32 s24, s24, 512
    v_lshlrev_b32 v{vU}, 3, v0
    v_add_u32 v{vU}, s24, v{vU}
    v_mov_b32 v{vOne}, 1
    s_waitcnt vmcnt(0)
    v_xor_b32 v11, s8, v11
    v_xor_b32 v15, s8, v15
    v_xor_b32 v19, s8, v19
    v_xor_b32 v23, s8, v23
    v_xor_b32 v95, s8, v95
    v_or3_b32 v11, v11, v15, v19
    v_or3_b32 v11, v11, v23, v95
    v_cmp_ne_u32 vcc, 0, v11
    """)
    retry("L_E_POLL", cost=20, sleep=2)
    a(ST(4))
    XW = [8, 9, 12, 13]
    SW = [16, 17, 20, 21]
    XX, XN, MM, RS, G, T = 24, 32, 40, 48, 56, 64
    for r in range(4):
        a(f"v_and_b32 v{RS+2*r}, s9, v{SW[r]}")
        a(f"v_lshlrev_b32 v{MM+2*r}, 16, v{SW[r]}")
    for r in range(4):
        a(f"v_rcp_f32 v{RS+2*r}, v{RS+2*r}")
        a(f"v_lshlrev_b32 v{XX+2*r}, 16, v{XW[r]}")
        a(f"v_and_b32 v{XX+2*r+1}, s9, v{XW[r]}")
    for r in range(4):
        a(f"v_pk_add_f32 {vr(XN+2*r,2)}, {vr(XX+2*r,2)}, {vr(MM+2*r,2)} op_sel_hi:[1,0] neg_lo:[0,1] neg_hi:[0,1]")
    for r in range(4):
        a(f"v_cvt_pk_bf16_f32 v{XN+2*r+1}, v{XN+2*r}, v{XN+2*r+1}")
    for r in range(4):
        a(f"v_lshlrev_b32 v{XN+2*r}, 16, v{XN+2*r+1}")
        a(f"v_and_b32 v{XN+2*r+1}, s9, v{XN+2*r+1}")
    for r in range(4):
        a(f"v_pk_mul_f32 {vr(XN+2*r,2)}, {vr(XN+2*r,2)}, {vr(RS+2*r,2)} op_sel_hi:[1,0]")
    a(f"""
    v_cvt_pk_bf16_f32 v8, v{XN}, v{XN+2}
    v_cvt_pk_bf16_f32 v9, v{XN+4}, v{XN+6}
    v_cvt_pk_bf16_f32 v10, v{XN+1}, v{XN+3}
    v_cvt_pk_bf16_f32 v11, v{XN+5}, v{XN+7}
    ds_write_b64 v{vU}, v[8:9]
    ds_write_b64 v{vU}, v[10:11] offset:{US}
    ds_write_b32 v{vFl}, v{vOne} offset:{16*FS_U}
    s_cmp_eq_u32 s60, 0
    s_cbranch_scc1 L_E_PRE
    """)
    a(f"""
    v_and_b32 v12, 1, v161
    v_cmp_eq_u32 vcc, 1, v12
    v_lshlrev_b32 v72, 16, v88
    v_and_b32 v73, s9, v88
    v_cndmask_b32 v12, v92, v93, vcc
    v_lshlrev_b32 v74, 16, v89
    v_and_b32 v75, s9, v89
    v_and_b32 v14, s9, v12
    v_lshlrev_b32 v12, 16, v12
    v_rcp_f32 v14, v14
    v_pk_add_f32 v[72:73], v[72:73], v[12:13] op_sel_hi:[1,0] neg_lo:[0,1] neg_hi:[0,1]
    v_pk_add_f32 v[74:75], v[74:75], v[12:13] op_sel_hi:[1,0] neg_lo:[0,1] neg_hi:[0,1]
    v_cvt_pk_bf16_f32 v73, v72, v73
    v_cvt_pk_bf16_f32 v75, v74, v75
    v_lshlrev_b32 v72, 16, v73
    v_and_b32 v73, s9, v73
    v_lshlrev_b32 v74, 16, v75
    v_and_b32 v75, s9, v75
    v_pk_mul_f32 v[72:73], v[72:73], v[14:15] op_sel_hi:[1,0]
    v_pk_mul_f32 v[74:75], v[74:75], v[14:15] op_sel_hi:[1,0]
    v_lshlrev_b32 v16, 3, v0
    v_add_u32 v16, s62, v16
    v_cvt_pk_bf16_f32 v72, v72, v73
    v_cvt_pk_bf16_f32 v73, v74, v75
    ds_write_b64 v16, v[72:73]
    v_and_b32 v17, 4, v0
    v_lshlrev_b32 v17, 6, v17
    v_and_b32 v18, 48, v0
    v_add3_u32 v17, v17, v18, s62
    ds_read_b128 v[72:75], v17
    ds_read_b128 v[76:79], v17 offset:64
    ds_read_b128 v[80:83], v17 offset:128
    ds_read_b128 v[84:87], v17 offset:192
    v_and_b32 v7, 31, v0
    v_lshlrev_b32 v7, 5, v7
    v_add_u32 v7, {FP}, v7
    v_lshrrev_b32 v16, 5, v0
    v_lshl_add_u32 v16, v16, 4, v7
    s_lshl_b32 s24, s61, 2
    v_add_u32 v16, s24, v16
    v_mov_b32 v18, {FLAGS+16*FS_FFN}
    v_cmp_gt_u32 vcc, 32, v0
    v_mov_b32 v{WD}, 0
    v_mov_b32 v{WD+1}, 0
    v_mov_b32 v{WD+2}, 0
    v_mov_b32 v{WD+3}, 0
    """)
    for ks in range(4):
        a(f"s_waitcnt lgkmcnt({3-ks})")
        for m in range(2):
            acc = vr(88 + 4 * m, 4)
            a(f"v_mfma_f32_16x16x32_bf16 {acc}, {vr(72+4*ks,4)}, {vr(BW+16*m+4*ks,4)}, {acc if ks else 0}")
    a(f"""
    s_lshl_b32 s24, s63, 12
    s_add_u32 s24, s24, {hex(F_PART)}
    v_lshlrev_b32 v160, 2, v160
    s_and_b32 s68, s8, 0xff
    s_bfe_u32 s69, s8, 0x80008
    s_bfe_u32 s70, s8, 0x80010
    s_lshr_b32 s71, s8, 24
    v_mov_b32 v19, 0xffffff00
    v_cndmask_b32 v14, v92, v88, vcc
    ds_write_b32 v16, v14
    ds_write_b32 v{vFl}, v{vOne} offset:{16*FS_FFN-16}
    L_F_SP:
    ds_read_b128 v[72:75], v18
    ds_read_b128 v[76:79], v7
    ds_read_b128 v[80:83], v7 offset:16
    s_waitcnt lgkmcnt(0)
    """)
    spin_quad(72, "L_F_SP")
    a(f"""
    v_add_f32 v76, v76, v77
    v_add_f32 v78, v78, v79
    v_add_f32 v80, v80, v81
    v_add_f32 v82, v82, v83
    v_add_f32 v76, v76, v78
    v_add_f32 v80, v80, v82
    v_cvt_pk_bf16_f32 v77, v76, v80
    v_lshlrev_b32 v76, 16, v77
    v_mul_f32 v78, {fh(-LOG2E)}, v76
    v_exp_f32 v78, v78
    v_and_b32 v80, s9, v77
    v_add_f32 v78, 1.0, v78
    v_rcp_f32 v78, v78
    s_nop 0
    v_mul_f32 v76, v76, v78
    v_cvt_pk_bf16_f32 v76, v76, v76
    v_lshlrev_b32 v76, 16, v76
    v_mul_f32 v76, v76, v80
    s_nop 1
    v_mov_b32_dpp v77, v76 quad_perm:[1,0,3,2] {DPP}
    v_cvt_pk_bf16_f32 v76, v76, v77
    s_nop 0
    """)
    SH = 32
    a("s_waitcnt lgkmcnt(0)")
    for i in range(16):
        a(f"v_readlane_b32 s{SH+i}, v76, {2*i}")
    for p in range(8):
        for tok in range(2):
            for ch in range(2):
                a(f"v_dot2c_f32_bf16 v{WD+2*tok+ch}, s{SH+8*tok+p}, v{WP+2*p+ch}")
    a(f"""
    s_nop 2
    v_and_or_b32 v{WD}, v{WD}, v19, s68
    v_and_or_b32 v{WD+1}, v{WD+1}, v19, s69
    v_and_or_b32 v{WD+2}, v{WD+2}, v19, s70
    v_and_or_b32 v{WD+3}, v{WD+3}, v19, s71
    buffer_store_dwordx4 {vr(WD,4)}, v160, s[12:15], s24 offen sc1
    {ST(5)}
    """)
    a(f"""
    L_E_PRE:
    v_lshlrev_b32 v{XN}, 16, v8
    v_and_b32 v{XN+2}, s9, v8
    v_lshlrev_b32 v{XN+4}, 16, v9
    v_and_b32 v{XN+6}, s9, v9
    v_lshlrev_b32 v{XN+1}, 16, v10
    v_and_b32 v{XN+3}, s9, v10
    v_lshlrev_b32 v{XN+5}, 16, v11
    v_and_b32 v{XN+7}, s9, v11
    s_mov_b32 s24, {fh(-LOG2E)}
    s_mov_b32 s20, s{S_OUT}
    s_mov_b32 s21, s{S_OUT+1}
    s_mov_b32 s22, 0x200000
    """)
    for i in range(4):
        a(f"v_pk_mul_f32 {vr(T+2*i,2)}, {vr(XN+2*i,2)}, s[24:25] op_sel_hi:[1,0]")
    vDr, vFs, vO = 5, 6, 76
    fillers = [
        f"v_lshrrev_b32 v12, 2, v0",
        f"v_and_b32 v13, 3, v0",
        f"v_lshl_add_u32 v12, v13, 2, v12",
        f"v_and_b32 v12, 15, v12",
        f"v_lshl_add_u32 v12, v13, 4, v12",
        f"v_lshlrev_b32 v{vDr}, 4, v12",
        f"v_lshlrev_b32 v{vO}, 12, v0",
        f"v_mov_b32 v14, {FLAGS+16*FS_TOP}",
    ]
    for i in range(8):
        a(f"v_exp_f32 v{T+i}, v{T+i}")
        a(fillers[i])
    a(f"""
    s_lshl_b32 s26, s4, 11
    s_add_u32 s26, s26, {KR}
    v_add_u32 v{vDr}, s26, v{vDr}
    s_lshl_b32 s26, s4, 4
    s_add_u32 s26, s26, {FLAGS}
    v_mov_b32 v{vFs}, s26
    """)
    for i in range(4):
        a(f"v_pk_add_f32 {vr(T+2*i,2)}, {vr(T+2*i,2)}, 1.0 op_sel_hi:[1,0]")
    a(f"""
    L_E_SPT:
    ds_read_b128 v[16:19], v14
    """)
    for i in range(8):
        a(f"v_rcp_f32 v{G+i}, v{T+i}")
    a(f"""
    s_waitcnt lgkmcnt(0)
    v_readfirstlane_b32 s28, v16
    v_readfirstlane_b32 s29, v17
    """)
    spin_quad(16, "L_E_SPT")
    a(f"""
    s_lshl_b32 s24, s59, 16
    s_and_b32 s25, s59, s9
    """)
    for i in range(4):
        a(f"v_pk_mul_f32 {vr(G+2*i,2)}, {vr(G+2*i,2)}, {vr(XN+2*i,2)}")
    for i in range(4):
        a(f"v_pk_mul_f32 {vr(T+2*i,2)}, {vr(XN+2*i,2)}, s[24:25]")
    for i in range(4):
        a(f"v_pk_fma_f32 {vr(XX+2*i,2)}, {vr(T+2*i,2)}, {vr(G+2*i,2)}, {vr(XX+2*i,2)}")
    a(f"""
    s_and_b32 s28, s28, 0x7ff
    s_and_b32 s29, s29, 0x7ff
    s_lshl_b32 s26, s4, 8
    s_sub_u32 s26, 2047, s26
    s_sub_u32 s28, s26, s28
    s_sub_u32 s29, s26, s29
    v_add_u32 v{vO+1}, 1024, v{vO}
    v_add_u32 v{vO+2}, 2048, v{vO}
    v_add_u32 v{vO+3}, 3072, v{vO}
    s_lshl_b32 s30, s4, 18
    s_add_u32 s30, s30, s58
    s_min_u32 s26, s28, s29
    s_cmp_ge_u32 s26, 256
    s_cbranch_scc1 L_E_SPD
    v_bfrev_b32 v12, 1
    """)
    for r in range(4):
        a(f"""
        v_lshl_add_u32 v13, v0, 2, {r}
        v_cmp_eq_u32 vcc, s28, v13
        v_cmp_eq_u32 s[24:25], s29, v13
        s_or_b64 vcc, vcc, s[24:25]
        v_cndmask_b32 v{vO+r}, v{vO+r}, v12, vcc
        """)
    Y = 8
    a(f"""
    L_E_SPD:
    ds_read_b128 v[72:75], v{vFs}
    ds_read_b128 {vr(Y,4)}, v{vDr}
    ds_read_b128 {vr(Y+4,4)}, v{vDr} offset:1024
    ds_read_b128 {vr(Y+8,4)}, v{vDr} offset:{KRS}
    ds_read_b128 {vr(Y+12,4)}, v{vDr} offset:{KRS+1024}
    s_waitcnt lgkmcnt(0)
    """)
    spin_quad(72, "L_E_SPD")
    for r in range(4):
        a(f"v_add_f32 v{T+2*r}, v{Y+r}, v{Y+4+r}")
        a(f"v_add_f32 v{T+2*r+1}, v{Y+8+r}, v{Y+12+r}")
    for r in range(4):
        a(f"v_pk_fma_f32 {vr(XX+2*r,2)}, {vr(T+2*r,2)}, {vr(G+2*r,2)}, {vr(XX+2*r,2)}")
    for r in range(4):
        a(f"v_cvt_pk_bf16_f32 v{72+r}, v{XX+2*r}, v{XX+2*r+1}")
    pace = opt.get("pace", 2)
    if pace:
        a(f"""
        s_cmp_lt_u32 s4, {pace}
        s_cbranch_scc1 L_E_ST
        s_lshl_b32 s26, s4, 2
        s_add_u32 s26, s26, {FLAGS+16*FS_PACE-4*pace}
        v_mov_b32 v12, s26
        L_E_SPP:
        ds_read_b32 v13, v12
        s_waitcnt lgkmcnt(0)
        v_cmp_eq_u32 vcc, 0, v13
        """)
        retry("L_E_SPP")
        a("L_E_ST:")
    if not stamps or True:
        a(ST(6))
    for r in range(4):
        a(f"buffer_store_dword v{72+r}, v{vO+r}, s[20:23], s30 offen")
    if pace:
        a(f"""
        s_waitcnt vmcnt(0)
        ds_write_b32 v{vFl}, v{vOne} offset:{16*FS_PACE}
        """)
    a(f"""
    s_cmp_lg_u32 s4, 4
    s_cbranch_scc1 L_END
    """)
    a(f"""
    s_add_u32 s68, s12, {hex(F_PART)}
    s_addc_u32 s69, s13, 0
    s_mov_b32 s70, {NSLICE*4096}
    s_mov_b32 s71, 0x00020000
    v_lshlrev_b32 v1, 12, v0
    v_add_u32 v2, 0x40000, v1
    s_lshl_b32 s26, s7, 4
    v_bfe_u32 v5, v0, 4, 1             ; ch
    v_lshlrev_b32 v44, 10, v161
    v_lshl_add_u32 v44, v5, 1, v44
    buffer_load_ushort v25, v44, s[16:19], s58 offen
    v_mul_u32_u24 v40, {US}, v5
    v_lshl_add_u32 v40, v161, 1, v40
    v_lshrrev_b32 v7, 8, v161          ; nb
    v_lshlrev_b32 v42, 4, v7
    v_add_u32 v42, {FLAGS}, v42
    v_mul_u32_u24 v43, {KRS}, v5
    v_lshl_add_u32 v43, v7, 11, v43
    v_bfe_u32 v8, v161, 2, 2           ; g
    v_bfe_u32 v9, v161, 4, 4           ; n
    v_lshl_add_u32 v9, v8, 2, v9
    v_and_b32 v9, 15, v9
    v_lshl_add_u32 v9, v8, 4, v9
    v_lshl_add_u32 v43, v9, 4, v43
    v_and_b32 v8, 3, v161
    v_lshl_add_u32 v43, v8, 2, v43
    v_add_u32 v43, {KR}, v43
    v_ashrrev_i32 v8, 31, v162
    v_not_b32 v8, v8
    v_or_b32 v8, 0x80000000, v8
    v_xor_b32 v6, v162, v8
    v_and_b32 v6, s9, v6
    v_mul_f32 v6, {fh(-LOG2E)}, v6
    v_exp_f32 v6, v6
    v_lshlrev_b32 v8, 4, v5
    v_add_f32 v6, 1.0, v6
    v_rcp_f32 v6, v6
    v_lshrrev_b32 v45, v8, s59
    v_cmp_gt_u32 vcc, {NSLICE-64}, v0
    v_cvt_pk_bf16_f32 v6, v6, v6
    v_lshlrev_b32 v45, 16, v45
    v_lshlrev_b32 v46, 16, v6
    v_mov_b32 v47, s8
    v_cndmask_b32 v47, 0, v47, vcc
    s_mov_b32 s24, 0x0c0c0400
    s_mov_b32 s25, 0x04000c0c
    L_F_POLL:
    buffer_load_dwordx4 v[8:11], v1, s[68:71], s26 offen sc1
    buffer_load_dwordx4 v[12:15], v2, s[68:71], s26 offen sc1
    s_waitcnt vmcnt(0)
    v_perm_b32 v16, v9, v8, s24
    v_perm_b32 v17, v11, v10, s25
    v_perm_b32 v18, v13, v12, s24
    v_perm_b32 v19, v15, v14, s25
    v_or_b32 v16, v16, v17
    v_or_b32 v18, v18, v19
    v_xor_b32 v16, s8, v16
    v_xor_b32 v18, v47, v18
    v_or_b32 v16, v16, v18
    v_cmp_ne_u32 vcc, 0, v16
    """)
    retry("L_F_POLL", cost=20, sleep=2)
    a(f"""
    {ST(5)}
    v_pk_add_f32 v[8:9], v[8:9], v[12:13]
    v_pk_add_f32 v[10:11], v[10:11], v[14:15]
    L_F_SPY:
    ds_read_b128 v[20:23], v42
    ds_read_u16 v24, v40 offset:512
    ds_read_b32 v26, v43
    ds_read_b32 v27, v43 offset:1024
    s_waitcnt lgkmcnt(0)
    """)
    spin_quad(20, "L_F_SPY")
    a(f"""
    v_permlane32_swap_b32 v8, v10
    v_permlane32_swap_b32 v9, v11
    v_lshlrev_b32 v24, 16, v24
    v_add_f32 v8, v8, v10
    v_add_f32 v9, v9, v11
    v_lshlrev_b32 v25, 16, v25
    v_add_f32 v26, v26, v27
    v_permlane16_swap_b32 v8, v9
    v_fma_f32 v26, v24, v45, v26
    v_add_f32 v8, v8, v9
    s_nop 1
    v_add_f32_dpp v8, v8, v8 row_ror:8 {DPP}
    s_nop 1
    v_add_f32_dpp v8, v8, v8 row_ror:4 {DPP}
    s_nop 1
    v_add_f32_dpp v8, v8, v8 row_ror:2 {DPP}
    s_nop 1
    v_add_f32_dpp v8, v8, v8 row_ror:1 {DPP}
    v_cvt_pk_bf16_f32 v8, v8, v8
    v_lshlrev_b32 v8, 16, v8
    v_mul_f32 v8, v8, v46
    v_cvt_pk_bf16_f32 v8, v8, v8
    v_lshlrev_b32 v8, 16, v8
    v_add_f32 v8, v8, v24
    v_cvt_pk_bf16_f32 v8, v8, v8
    v_lshlrev_b32 v8, 16, v8
    v_mul_f32 v9, {fh(-LOG2E)}, v8
    v_exp_f32 v9, v9
    s_mov_b32 s24, 0x00010001
    v_add_f32 v9, 1.0, v9
    v_rcp_f32 v9, v9
    s_mov_b32 s25, 0x00010001
    v_mul_f32 v8, v8, v9
    v_fma_f32 v8, v8, v26, v25
    v_cvt_pk_bf16_f32 v8, v8, v8
    v_mov_b32 v10, {F_EPOCH}
    v_mov_b32 v11, s8
    s_mov_b64 exec, s[24:25]
    buffer_store_short v8, v44, s[20:23], s58 offen
    s_cmp_lg_u32 s2, 0
    s_cbranch_scc1 L_END
    s_mov_b64 exec, 1
    buffer_store_dword v11, v10, s[12:15], 0 offen
    """)
    a.end("L_END")

    a("L_M:")
    a(f"""
    s_lshr_b32 s60, s4, 1              ; ch
    s_and_b32 s61, s4, 1
    s_lshl_b32 s10, s7, 9
    s_lshl_b32 s11, s60, 8
    s_add_u32 s10, s10, s11
    s_lshl_b32 s11, s7, 2
    v_lshlrev_b32 v3, 2, v0
    s_mov_b32 s18, 0x20000
    s_mov_b32 s22, 0x20000
    s_mov_b32 s26, 0x20000
    s_mov_b32 s30, 0x20000
    s_waitcnt lgkmcnt(0)
    s_load_dword s62, s[{S_LDT}:{S_LDT+1}], s11
    s_mov_b32 s16, s{S_LA}
    s_mov_b32 s17, s{S_LA+1}
    s_mov_b32 s20, s{S_AI}
    s_mov_b32 s21, s{S_AI+1}
    s_mov_b32 s24, s{S_CR}
    s_mov_b32 s25, s{S_CR+1}
    s_mov_b32 s28, s{S_CI}
    s_mov_b32 s29, s{S_CI+1}
    buffer_load_dword v4, v3, s[16:19], s10 offen
    buffer_load_dword v5, v3, s[20:23], s10 offen
    buffer_load_dword v6, v3, s[24:27], s10 offen
    buffer_load_dword v7, v3, s[28:31], s10 offen
    s_cmp_eq_u32 s4, 0
    s_cselect_b32 s64, s{S_WG}, s{S_WU}
    s_cselect_b32 s65, s{S_WG+1}, s{S_WU+1}
    s_cmp_ge_u32 s4, 2
    s_cselect_b32 s64, s{S_WD}, s64
    s_cselect_b32 s65, s{S_WD+1}, s65
    s_mov_b32 s66, {512*2752}
    s_mov_b32 s67, 0x00020000
    v_lshrrev_b32 v8, 2, v0
    v_mul_u32_u24 v8, 2752, v8
    v_and_b32 v9, 3, v0
    v_lshlrev_b32 v9, 7, v9
    v_min_u32 v9, 348, v9
    v_add_u32 v8, v8, v9
    s_mul_i32 s68, s6, {16*2752}
    s_mul_i32 s69, s5, 352
    s_add_u32 s68, s68, s69
    s_cmp_lt_u32 s4, 2
    s_cbranch_scc1 L_M_PF
    v_lshlrev_b32 v8, 7, v0
    s_mul_i32 s68, s5, {176*1024}
    s_mul_i32 s69, s6, {44*128}
    s_add_u32 s68, s68, s69
    s_lshl_b32 s69, s61, 6
    s_add_u32 s68, s68, s69
    L_M_PF:
    buffer_load_dword v167, v8, s[64:67], s68 offen
    s_mul_i32 s63, s60, {KRS}
    s_add_u32 s63, s63, {KR}
    v_lshlrev_b32 v8, 3, v0
    v_add_u32 v8, s63, v8
    s_mov_b32 s70, {fh(LOG2E)}
    s_lshl_b32 s11, s60, 4
    s_mov_b32 s72, {fh(INV2PI)}
    s_mov_b32 s73, {fh(-INV2PI)}
    s_cmp_eq_u32 s61, 0
    s_cselect_b32 s72, s73, s72
    """)
    vFl, vOne, vFr = 164, 165, 166
    flag_addr(vFl, "s4", 74)
    a(f"""
    v_mov_b32 v{vOne}, 1
    s_xor_b32 s74, s4, 1
    s_lshl_b32 s74, s74, 2
    s_add_u32 s74, s74, {FLAGS}
    v_mov_b32 v{vFr}, s74
    s_barrier
    s_waitcnt lgkmcnt(0)
    s_lshr_b32 s62, s62, s11
    s_lshl_b32 s62, s62, 16
    v_mov_b32 v9, s62
    v_mul_f32 v9, s70, v9
    v_exp_f32 v9, v9
    s_nop 0
    v_cvt_pk_bf16_f32 v9, v9, v9
    v_lshlrev_b32 v9, 16, v9
    s_waitcnt vmcnt(3)
    {ST(1)}
    v_lshlrev_b32 v10, 16, v4
    v_and_b32 v11, s9, v4
    v_mul_f32 v10, s70, v10
    v_mul_f32 v11, s70, v11
    v_exp_f32 v10, v10
    v_exp_f32 v11, v11
    v_lshlrev_b32 v12, 16, v5
    v_and_b32 v13, s9, v5
    v_cvt_pk_bf16_f32 v10, v10, v11
    v_mul_f32 v12, v12, v9
    v_mul_f32 v13, v13, v9
    v_and_b32 v11, s9, v10
    v_lshlrev_b32 v10, 16, v10
    v_mul_f32 v12, s72, v12
    v_mul_f32 v13, s72, v13
    v_mul_f32 v10, v10, v9
    v_mul_f32 v11, v11, v9
    v_mul_f32 v10, {fh(-LOG2E)}, v10
    v_mul_f32 v11, {fh(-LOG2E)}, v11
    """)
    ZR, ZI, T = 10, 12, 14
    def direct(dst, p):
        a(f"""
        v_mul_f32 v{T}, {p}, v{ZR}
        v_mul_f32 v{T+1}, {p}, v{ZR+1}
        v_mul_f32 v{T+2}, {p}, v{ZI}
        v_mul_f32 v{T+3}, {p}, v{ZI+1}
        v_exp_f32 v{T}, v{T}
        v_exp_f32 v{T+1}, v{T+1}
        v_fract_f32 v{T+2}, v{T+2}
        v_fract_f32 v{T+3}, v{T+3}
        v_cos_f32 v{dst}, v{T+2}
        v_sin_f32 v{dst+1}, v{T+2}
        v_cos_f32 v{dst+2}, v{T+3}
        v_sin_f32 v{dst+3}, v{T+3}
        v_mul_f32 v{dst}, v{dst}, v{T}
        v_mul_f32 v{dst+1}, v{dst+1}, v{T}
        v_mul_f32 v{dst+2}, v{dst+2}, v{T+1}
        v_mul_f32 v{dst+3}, v{dst+3}, v{T+1}
        """)
    TM = 20
    tog = [0]
    def cmul2(dst, src, mul):
        for o in (0, 2):
            a(f"v_pk_mul_f32 {vr(TM+o,2)}, {vr(src+o,2)}, {vr(mul+o,2)} op_sel:[1,1] op_sel_hi:[0,1] neg_lo:[1,0]")
        for o in (0, 2):
            a(f"v_pk_fma_f32 {vr(dst+o,2)}, {vr(src+o,2)}, {vr(mul+o,2)}, {vr(TM+o,2)} op_sel:[0,0,0] op_sel_hi:[1,0,1]")
    def row(src, slot):
        p = 24 + 2 * tog[0]; tog[0] ^= 1
        a(f"v_cvt_pk_bf16_f32 v{p}, v{src}, v{src+1}")
        a(f"v_cvt_pk_bf16_f32 v{p+1}, v{src+2}, v{src+3}")
        a(f"ds_write_b64 v8, {vr(p,2)} offset:{slot*ROWS}")
    V, M1, M2, M4, M8, MB, U, W = 28, 32, 36, 40, 44, 48, 52, 56
    a("""
    s_cmp_eq_u32 s61, 0
    s_cbranch_scc1 L_M_ALPHA
    """)
    direct(M8, fh(8.0))
    a(f"""
    v_mov_b32 v{V}, 1.0
    v_mov_b32 v{V+1}, 0
    v_mov_b32 v{V+2}, 1.0
    v_mov_b32 v{V+3}, 0
    s_mov_b32 s74, 0
    L_M_BLOOP:
    """)
    for i in range(4):
        row(V, 32 + i)
        cmul2(V, V, M8)
    a(f"""
    v_add_u32 v8, {4*ROWS}, v8
    s_add_u32 s74, s74, 1
    s_cmp_lt_u32 s74, 8
    s_cbranch_scc1 L_M_BLOOP
    s_branch L_M_ROWS
    L_M_ALPHA:
    """)
    direct(M1, "1.0")
    direct(MB, fh(256.0))
    a(f"""
    v_add_f32 v9, v9, v9
    s_waitcnt vmcnt(1)
    v_lshlrev_b32 v{V}, 16, v6
    v_lshlrev_b32 v{V+1}, 16, v7
    v_and_b32 v{V+2}, s9, v6
    v_and_b32 v{V+3}, s9, v7
    v_mul_f32 v{V}, v{V}, v9
    v_mul_f32 v{V+1}, -v{V+1}, v9
    v_mul_f32 v{V+2}, v{V+2}, v9
    v_mul_f32 v{V+3}, -v{V+3}, v9
    """)
    cmul2(M2, M1, M1)
    cmul2(U, V, MB)
    row(V, 0)
    cmul2(M4, M2, M2)
    for i in range(1, 11):
        cmul2(V, V, M1); row(V, i)
    cmul2(M8, M4, M4)
    row(U, 11)
    cmul2(W, U, M2); row(W, 12)
    for i in range(13, 17):
        cmul2(W, W, M2); row(W, i)
    for k in range(2):
        cmul2(U, U, MB); row(U, 17 + 3 * k)
        cmul2(W, U, M4); row(W, 18 + 3 * k)
        cmul2(W, U, M8); row(W, 19 + 3 * k)
    for k in range(4):
        cmul2(U, U, MB); row(U, 23 + 2 * k)
        cmul2(W, U, M8); row(W, 24 + 2 * k)
    a(f"""
    L_M_ROWS:
    ds_write_b32 v{vFl}, v{vOne} offset:{16*FS_KROW}
    {ST(2)}
    v_and_b32 v3, 31, v0               ; i / b
    v_lshrrev_b32 v4, 5, v0
    v_lshrrev_b32 v5, 3, v3            ; q
    v_bfe_u32 v6, v3, 2, 1             ; h
    v_and_b32 v7, 3, v3                ; r
    v_add_u32 v10, v5, v6
    v_lshlrev_b32 v10, 2, v10          ; 4q+4h
    v_lshl_add_u32 v11, v6, 1, 11      ; 11+2h
    v_mad_u32_u24 v12, v6, 3, 17       ; 17+3h
    v_cmp_eq_u32 vcc, 2, v5
    v_lshl_add_u32 v13, v6, 2, 23      ; 23+4h
    s_cmp_eq_u32 s61, 0
    v_cndmask_b32 v10, v10, v11, vcc
    v_cmp_eq_u32 vcc, 3, v5
    s_cselect_b64 s[76:77], -1, 0
    s_nop 0
    v_cndmask_b32 v10, v10, v12, vcc
    v_cndmask_b32 v10, v13, v10, s[76:77]
    v_add_u32 v10, v10, v7
    v_mul_u32_u24 v1, {ROWS}, v10
    v_mul_u32_u24 v2, {ROWS}, v3
    v_lshlrev_b32 v11, 4, v4
    v_add3_u32 v1, v1, v11, s63
    v_add3_u32 v2, v2, v11, s63
    L_M_SP1:
    ds_read_b32 v14, v{vFr} offset:{16*FS_KROW}
    s_waitcnt lgkmcnt(0)
    v_cmp_eq_u32 vcc, 0, v14
    """)
    retry("L_M_SP1")
    ACC, FR, NB = 16, 32, 6
    def rd(s):
        r = FR + 8 * (s % NB)
        a(f"ds_read_b128 {vr(r,4)}, v1 offset:{32*s}")
        a(f"ds_read_b128 {vr(r+4,4)}, v2 offset:{32*ROWS + 32*s}")
    for s in range(NB):
        rd(s)
    a(f"""
    s_mul_i32 s74, s60, {4*KCS}
    s_add_u32 s74, s74, {KI}
    v_lshlrev_b32 v10, 4, v3           ; 16b
    v_lshl_add_u32 v11, v4, 3, v10     ; 16b+8h
    v_sub_u32 v11, {2*(2044-256)}, v11
    v_add_u32 v11, s74, v11
    v_lshl_add_u32 v12, v4, 9, v10
    v_sub_u32 v12, {2*(2040-512)}, v12
    v_add_u32 v12, s74, v12
    v_lshl_add_u32 v13, v4, 10, v10
    v_sub_u32 v13, {2*(2040-1280)}, v13
    v_add_u32 v13, s74, v13
    v_and_b32 v10, 1, v3
    v_cmp_eq_u32 s[76:77], 1, v10      ; b odd
    v_cmp_eq_u32 vcc, 63, v0
    """)
    for s in range(16):
        rem = min(15 - s, NB - 1)
        a(f"s_waitcnt lgkmcnt({2*rem})")
        r = FR + 8 * (s % NB)
        c = "0" if s == 0 else vr(ACC, 16)
        a(f"v_mfma_f32_32x32x16_bf16 {vr(ACC,16)}, {vr(r,4)}, {vr(r+4,4)}, {c}")
        if s + NB < 16:
            rd(s + NB)
    a(f"""
    s_nop 12
    {ST(3)}
    s_cmp_eq_u32 s61, 0
    s_cbranch_scc0 L_M_T2
    """)
    d = lambda i: f"v{ACC+i}"
    preg = [32]
    def alloc(n):
        r = preg[0]; preg[0] += n
        return r
    def write4(w, addr, extra):
        for c in range(4):
            o = (c + 1) % 4
            p = alloc(2)
            a(f"v_cvt_pk_bf16_f32 v{p}, {w[o+3]}, {w[o+2]}")
            a(f"v_cvt_pk_bf16_f32 v{p+1}, {w[o+1]}, {w[o]}")
            a(f"ds_write_b64 v{addr}, {vr(p,2)} offset:{c*KCS+extra}")
    def write8(w, addr, extra):
        for c in range(4):
            o = (c + 1) % 4
            p = alloc(4)
            for k in range(4):
                a(f"v_cvt_pk_bf16_f32 v{p+k}, {w[o+7-2*k]}, {w[o+6-2*k]}")
            a(f"ds_write_b128 v{addr}, {vr(p,4)} offset:{c*KCS+extra}")
    a(f"v_cndmask_b32 {d(5)}, {d(5)}, {d(4)}, vcc")
    a(f"v_cndmask_b32 {d(11)}, {d(11)}, {d(10)}, vcc")
    write4([d(i) for i in range(7)], 11, 512)
    p = alloc(6)
    a(f"""
    v_cvt_pk_bf16_f32 v{p}, {d(0)}, 0
    v_cvt_pk_bf16_f32 v{p+1}, {d(1)}, {d(0)}
    v_cvt_pk_bf16_f32 v{p+2}, {d(2)}, {d(1)}
    v_mov_b32 v{p+3}, v{p}
    s_mov_b64 exec, 1
    ds_write_b32 v11, v{p} offset:{512+8}
    ds_write_b32 v11, v{p+1} offset:{KCS+512+8}
    ds_write_b64 v11, {vr(p+2,2)} offset:{2*KCS+512+8}
    s_mov_b64 exec, -1
    """)
    write4([d(8), d(8), d(9), d(10), d(10), d(10), d(11)], 11, 0)
    a("s_waitcnt lgkmcnt(4)")
    write8([d(12)] * 3 + [d(13)] * 3 + [d(14)] * 5, 12, 0)
    a("s_branch L_M_IMG")
    a("L_M_T2:")
    preg[0] = 32
    for k in range(2):
        r0, r1 = d(2 * k), d(2 * k + 1)
        x = alloc(2)
        a(f"v_cndmask_b32 v{x}, {r0}, {r1}, s[76:77]")
        write8([r0] * 4 + [f"v{x}"] + [r1] * 6, 13, 512 if k == 0 else 0)
    a(f"""
    L_M_IMG:
    ds_write_b32 v{vFl}, v{vOne} offset:{16*FS_KIMG}
    """)
    vA, vF, vD, vG, vUF = 1, 2, 3, 4, 5
    SLOT0, NSLOT, ACC0 = 8, 31, 132
    a(f"""
    v_and_b32 v9, 15, v0
    v_lshrrev_b32 v10, 4, v0
    v_and_b32 v11, 3, v9
    v_lshrrev_b32 v12, 2, v9
    s_lshl_b32 s75, s61, 8
    s_sub_u32 s74, s74, s75
    s_add_u32 s74, s74, {2*2028 - 64*59 + 8}
    v_mul_u32_u24 v{vA}, {KCS}, v11
    v_lshl_add_u32 v{vA}, v10, 4, v{vA}
    v_cmp_eq_u32 vcc, 3, v11
    v_lshlrev_b32 v12, 3, v12
    v_add_u32 v13, 8, v12
    v_cndmask_b32 v12, v12, v13, vcc
    v_sub_u32 v{vA}, v{vA}, v12
    v_add_u32 v{vA}, s74, v{vA}
    s_mul_i32 s74, s60, {US}
    s_sub_u32 s74, s74, s75
    s_add_u32 s74, s74, {512 - 32 - 192}
    v_lshl_add_u32 v11, v9, 1, v10
    v_lshlrev_b32 v11, 4, v11
    v_add_u32 v{vF}, s74, v11
    v_lshl_add_u32 v11, v10, 2, v9
    v_and_b32 v11, 15, v11
    v_lshl_add_u32 v11, v10, 4, v11
    v_lshlrev_b32 v11, 4, v11
    s_lshl_b32 s74, s61, 10
    s_add_u32 s74, s74, s63
    v_add_u32 v{vD}, s74, v11
    v_mov_b32 v{vUF}, {FLAGS+16*FS_U}
    L_M_SP2:
    ds_read_b32 v14, v{vFr} offset:{16*FS_KIMG}
    s_waitcnt lgkmcnt(0)
    v_cmp_eq_u32 vcc, 0, v14
    """)
    retry("L_M_SP2")
    a(ST(4))
    HELD = 5
    mf = []
    for j in range(8):
        for s_ in range(8 - j):
            for tp in range(4):
                fa = ("A", s_, tp, 0 if s_ <= HELD else j)
                mf.append((s_, j, tp, fa, ("F", j, tp, 0)))
    first, last = {}, {}
    for idx, m in enumerate(mf):
        for fr in (m[3], m[4]):
            first.setdefault(fr, idx); last[fr] = idx
    lastacc = {}
    for idx, m in enumerate(mf):
        lastacc[m[0] + m[1]] = idx
    free = list(range(NSLOT))
    slot, ready_at = {}, {}
    opno, done = [0], [0]
    gate = [-1]
    def room(n): return opno[0] + n - done[0] <= 15
    def wait_for(op):
        if op > done[0]:
            a(f"s_waitcnt lgkmcnt({opno[0]-op})"); done[0] = op
    def issue(fr):
        kind, b, tp, _ = fr
        sl = free.pop(0); slot[fr] = sl
        r = SLOT0 + 4 * sl
        if kind == "A":
            off = 64 * (59 - 8 * b - tp)
            a(f"ds_read_b64 {vr(r,2)}, v{vA} offset:{off}")
            a(f"ds_read_b64 {vr(r+2,2)}, v{vA} offset:{off+8}")
            opno[0] += 2
        else:
            a(f"ds_read_b128 {vr(r,4)}, v{vF} offset:{64*(3-tp)+512*b}")
            opno[0] += 1
        ready_at[fr] = opno[0]
    pend = sorted(first, key=lambda fr: first[fr])
    def prefetch(maxn, cur, reserve=0):
        n = 0
        for fr in list(pend):
            if n >= maxn: break
            if fr[0] == "F" and fr[1] > gate[0]:
                continue
            if first[fr] > cur + 24: break
            need_before = sum(1 for g in pend if g is not fr and first[g] < first[fr])
            if len(free) <= need_before: break
            if not room(2 if fr[0] == "A" else 1): break
            issue(fr); pend.remove(fr); n += 1
    pending_w = []
    def flush_writes(force=False):
        for pw in list(pending_w):
            if pw[1] <= 0 or force:
                if force and pw[1] > 0:
                    a(f"s_nop {pw[1]-1}")
                if not room(2): wait_for(opno[0] - 13)
                nb = pw[0]
                a(f"ds_write_b128 v{vD}, {vr(ACC0+4*nb,4)} offset:{2048*nb}")
                a(f"ds_write_b32 v{vFl}, v{vOne} offset:{16*nb}")
                opno[0] += 2
                pending_w.remove(pw)
    gate_read = {}
    def gate_issue(j):
        if not room(1): wait_for(opno[0] - 14)
        a(f"ds_read_b32 v{vG}, v{vUF} offset:{4*j}")
        opno[0] += 1
        gate_read[j] = opno[0]
    def gate_check(j):
        flush_writes(force=True)
        wait_for(gate_read[j])
        lab, ok = a.uid("L_G"), a.uid("L_GOK")
        a(f"""
        {lab}:
        v_cmp_eq_u32 vcc, 0, v{vG}
        s_cbranch_vccz {ok}
        s_sub_u32 s3, s3, 1
        s_cbranch_scc1 L_END
        ds_read_b32 v{vG}, v{vUF} offset:{4*j}
        s_waitcnt lgkmcnt(0)
        s_branch {lab}
        {ok}:
        """)
        gate[0] = j
    for fr in list(pend):
        if fr[0] == "A" and fr[1] <= HELD:
            if not room(2): wait_for(opno[0] - 8)
            issue(fr); pend.remove(fr)
    gate_issue(0); gate_check(0)
    a(ST(5))
    stage_start = {}
    for idx, m in enumerate(mf):
        stage_start.setdefault(m[1], idx)
    chk_at = {}
    iss_at = {}
    for j in range(1, 8):
        ln = stage_start[j] - stage_start[j - 1]
        c = stage_start[j] - min(8, max(0, ln - 12))
        chk_at[c] = j
        iss_at[max(stage_start[j - 1], c - 6)] = j
    started = set()
    prefetch(100, 0)
    for idx, (s_, j_, tp, fa, ff) in enumerate(mf):
        if idx in chk_at:
            gate_check(chk_at[idx]); prefetch(4, idx)
        if idx in iss_at:
            gate_issue(iss_at[idx])
        while fa not in slot or ff not in slot:
            fr = fa if fa not in slot else ff
            if not room(2): wait_for(opno[0] - 12)
            assert free, "no slot"
            issue(fr); pend.remove(fr)
        wait_for(max(ready_at[fa], ready_at[ff]))
        nb = s_ + j_
        acc = vr(ACC0 + 4 * nb, 4)
        c = acc if nb in started else "0"
        started.add(nb)
        a(f"v_mfma_f32_16x16x32_bf16 {acc}, {vr(SLOT0+4*slot[fa],4)}, {vr(SLOT0+4*slot[ff],4)}, {c}")
        for pw in pending_w: pw[1] -= 1
        for fr in (fa, ff):
            if last[fr] == idx: free.append(slot[fr])
        if lastacc[nb] == idx: pending_w.append([nb, 8])
        flush_writes()
        prefetch(1, idx)
    flush_writes(force=True)
    a(ST(6))
    a("L_END:")
    a.stamp_dump(WS_STAMP, 12, 256)
    a("s_endpgm")
    hdr = open("recurrent_scan__ssm_conv_s4d__moe_arch_mod__prompt.s.ref").read().split("; Override")[0]
    hdr += f"; @launch grid=(256,1,1) block=(768,1,1) lds={LDS}\n"
    txt = hdr + a.text() + '.section .rodata,"a"\n' + kernel_desc(NAME, 168, 102 if stamps else 80)
    open(out, "w").write(txt)

if __name__ == "__main__":
    opt = {}
    for x in sys.argv[2:]:
        if "=" in x:
            k, v = x.split("="); opt[k] = int(v)
    gen(sys.argv[1], "--stamps" in sys.argv, opt)
```

```python
import sys
sys.path.insert(0, "gen")
from asmlib import *
from layout import *

NAME = "recurrent_scan__ssm_conv_s4d__moe_arch_mod__prompt_kernel"
US = 4608
KI = 2 * US
KCS = 4160
ROWS = 528
KR = KI + 8 * KCS
KRS = 64 * ROWS
FW = KR + 2 * KRS
XTL = FW + 32768
FP = XTL + 8192
FLAGS = FP + 1024
NSET = 19
DUM = FLAGS + 16 * NSET
LDS = DUM + 256 + 16 * NSET + 16
FS_U, FS_KIMG, FS_FFN, FS_TOP, FS_KEY, FS_PACE, FS_KROW = 8, 11, 12, 13, 14, 15, 17
SPIN_BUDGET = 100000
S_X, S_LA, S_AI, S_CR, S_CI, S_LDT, S_DSK = 32, 34, 36, 38, 40, 42, 44
S_WR, S_WG, S_WU, S_WD, S_OUT = 48, 50, 52, 54, 56
KW = 3

def gen(out, stamps=False, opt=None):
    opt = opt or {}
    xmode = opt.get("xmode", 1)
    pretouch = opt.get("pretouch", 0)
    pf_early = opt.get("pf_early", 0)
    npoll = opt.get("npoll", 2)
    pace = opt.get("pace", 2)
    xtries = opt.get("xtries", 64)
    a = Asm(); a.stamps = stamps; a.dbgst = bool(opt.get('dbg', 0))
    ST = lambda i: (f"s_memrealtime s[{80+2*i}:{81+2*i}]" if stamps else "")
    a('.amdgcn_target "amdgcn-amd-amdhsa--gfx950"\n.text')
    a(f".globl {NAME}\n.p2align 8\n.type {NAME},@function\n{NAME}:")
    a.stamp_init()
    vFl, vOne = 164, 165
    codepf = opt.get("codepf", 1)
    CODEPF = f"""
    s_getpc_b64 s[64:65]
    v_lshlrev_b32 v10, 7, v0
    s_and_b32 s66, s4, 1
    s_lshl_b32 s66, s66, 13
    v_add_u32 v10, s66, v10
    v_min_u32 v10, L_CODE_END - L_PCREF - 4, v10
    v_mov_b32 v11, s65
    v_add_co_u32 v10, vcc, s64, v10
    s_nop 1
    v_addc_co_u32 v11, vcc, 0, v11, vcc
    global_load_dword v167, v[10:11], off
    """.replace("v_lshlrev_b32 v10, 7, v0", "L_PCREF:\nv_lshlrev_b32 v10, 7, v0") if codepf else ""
    STM = (lambda i: '') if opt.get('mst', 0) else ST
    PRIO = lambda n: (f"s_setprio {n}" if opt.get("prio", 1) else "")
    a(f"""
    s_cmp_ge_u32 s2, 256
    s_cbranch_scc1 L_END
    s_load_dwordx16 s[32:47], s[0:1], 0
    s_load_dwordx2 s[12:13], s[0:1], 112
    s_load_dwordx8 s[48:55], s[0:1], 64
    s_load_dwordx2 s[56:57], s[0:1], 96
    v_lshrrev_b32 v1, 6, v0
    v_and_b32 v0, 63, v0
    v_readfirstlane_b32 s4, v1
    s_and_b32 s5, s2, 7
    s_lshr_b32 s6, s2, 3
    s_lshl_b32 s7, s5, 5
    s_add_u32 s7, s7, s6
    s_lshl_b32 s58, s7, 2
    v_lshlrev_b32 v1, 4, v0
    s_cmp_ge_u32 s4, 8
    s_cbranch_scc1 L_P_EF
    s_cmp_ge_u32 s4, 4
    s_cbranch_scc1 L_P_EL
    s_lshr_b32 s60, s4, 1              ; ch
    s_lshl_b32 s10, s7, 9
    s_lshl_b32 s11, s60, 8
    s_add_u32 s10, s10, s11
    v_lshl_add_u32 v3, v0, 2, s10
    s_waitcnt lgkmcnt(0)
    global_load_dword v4, v3, s[{S_LA}:{S_LA+1}]
    global_load_dword v5, v3, s[{S_AI}:{S_AI+1}]
    s_load_dword s73, s[{S_LDT}:{S_LDT+1}], s58
    global_load_dword v6, v3, s[{S_CR}:{S_CR+1}]
    global_load_dword v7, v3, s[{S_CI}:{S_CI+1}]
    {CODEPF}
    s_barrier
    s_branch L_M
    L_P_EF:
    s_sub_u32 s61, s4, 8               ; f
    v_lshrrev_b32 v2, 3, v0
    v_and_b32 v3, 7, v0
    v_lshlrev_b32 v2, 10, v2
    s_lshl_b32 s10, s6, 16
    s_lshl_b32 s11, s61, 14
    v_lshl_add_u32 v2, v3, 4, v2
    s_add_u32 s10, s10, s11
    s_lshl_b32 s11, s5, 7
    s_add_u32 s10, s10, s11
    s_lshl_b32 s62, s61, 11
    s_add_u32 s62, s62, {XTL}
    s_mov_b32 m0, s62
    v_add_u32 v2, s10, v2
    v_add_u32 v3, {8192-1024}, v2
    s_waitcnt lgkmcnt(0)
    global_load_lds_dwordx4 v2, s[{S_X}:{S_X+1}]
    global_load_lds_dwordx4 v3, s[{S_X}:{S_X+1}] offset:1024
    s_branch L_P_E
    L_P_EL:
    v_min_u32 v6, {16*NSET}, v1
    v_add_u32 v6, {FLAGS}, v6
    v_mov_b32 v24, 0
    v_mov_b32 v25, 0
    v_mov_b32 v26, 0
    v_mov_b32 v27, 0
    ds_write_b128 v6, v[24:27]
    v_and_b32 v2, 31, v0
    v_lshrrev_b32 v3, 5, v0
    v_lshlrev_b32 v2, 4, v2
    s_lshl_b32 s11, s2, 13
    s_lshl_b32 s10, s4, 11
    v_lshl_add_u32 v3, v3, 10, v2
    s_add_u32 s10, s10, s11
    s_sub_u32 s10, s10, 8192
    v_add_u32 v3, s10, v3
    s_waitcnt lgkmcnt(0)
    global_load_dwordx4 v[8:11], v3, s[{S_X}:{S_X+1}]
    global_load_dwordx4 v[12:15], v3, s[{S_X}:{S_X+1}] offset:512
    global_load_dwordx4 v[16:19], v2, s[{S_WR}:{S_WR+1}]
    global_load_dwordx4 v[20:23], v2, s[{S_WR}:{S_WR+1}] offset:512
    L_P_E:
    s_load_dword s8, s[12:13], {F_EPOCH}
    s_load_dword s59, s[{S_DSK}:{S_DSK+1}], s58
    s_barrier
    s_mov_b32 s14, {hex(WS_SIZE)}
    s_mov_b32 s15, 0x00020000
    s_sub_u32 s4, s4, 4
    s_lshl_b32 s75, s7, 13
    s_lshl_b32 s10, s4, 10
    s_add_u32 s75, s75, s10
    s_add_u32 s75, s75, {hex(F2_XX)}
    {"buffer_load_dwordx4 v[64:67], v1, s[12:15], s75 offen nt" if pretouch else ""}
    s_mov_b32 s16, s{S_X}
    s_mov_b32 s17, s{S_X+1}
    s_mov_b32 s18, 0x200000
    s_mov_b32 s19, 0x00020000
    s_mov_b32 s23, 0x00020000
    s_mov_b32 s27, 0x00020000
    s_mov_b32 s3, {SPIN_BUDGET}
    s_mov_b32 s9, 0xffff0000
    v_mov_b32 v{vOne}, 1
    s_mul_i32 s63, s5, 11
    s_add_u32 s63, s63, s6
    s_cmp_lt_u32 s6, 11
    s_cselect_b32 s63, s63, 1000
    s_cmp_lt_u32 s63, {NSLICE}
    s_cselect_b32 s60, 1, 0
    s_lshl_b32 s26, s4, 2
    s_add_u32 s26, s26, {FLAGS}
    v_lshlrev_b32 v{vFl}, 2, v0
    v_add_u32 v{vFl}, {DUM}, v{vFl}
    v_writelane_b32 v{vFl}, s26, 0
    s_cmp_ge_u32 s4, 4
    s_cbranch_scc1 L_EF
    """)
    def retry(lab, cost=1, sleep=1):
        ok = a.uid("L_OK")
        a(f"""
        s_cbranch_vccz {ok}
        s_sub_u32 s3, s3, {cost}
        s_cbranch_scc1 L_END
        {f"s_sleep {sleep}" if sleep else ""}
        s_branch {lab}
        {ok}:
        """)
    def spin_quad(t, lab):
        a(f"""
        v_min3_u32 v{t}, v{t}, v{t+1}, v{t+2}
        v_min_u32 v{t}, v{t}, v{t+3}
        v_cmp_eq_u32 vcc, 0, v{t}
        """)
        retry(lab)
    def flag_addr(dst, widx, tmp_s):
        a(f"""
        s_lshl_b32 s{tmp_s}, {widx}, 2
        s_add_u32 s{tmp_s}, s{tmp_s}, {FLAGS}
        v_lshlrev_b32 v{dst}, 2, v0
        v_add_u32 v{dst}, {DUM}, v{dst}
        v_writelane_b32 v{dst}, s{tmp_s}, 0
        """)
    def tag_calc():
        a("""
        s_getreg_b32 s74, hwreg(HW_REG_XCC_ID, 0, 4)
        s_mul_i32 s8, s8, 0x9E3779B1
        s_add_u32 s8, s8, 0x7F4A7C15
        s_add_u32 s74, s74, s8
        s_add_u32 s74, s74, 1
        """)
    ZR, ZI, T = 10, 12, 14
    def kg_setup(sdt, ssh, sgn):
        a(f"""
        s_lshr_b32 {sdt}, {sdt}, {ssh}
        s_lshl_b32 {sdt}, {sdt}, 16
        s_mov_b32 s70, {fh(LOG2E)}
        v_mov_b32 v9, {sdt}
        v_mul_f32 v9, s70, v9
        v_exp_f32 v9, v9
        s_nop 0
        v_cvt_pk_bf16_f32 v9, v9, v9
        v_lshlrev_b32 v9, 16, v9
        """)
    def kg_setup2(sgn):
        a(f"""
        v_lshlrev_b32 v10, 16, v4
        v_and_b32 v11, s9, v4
        v_mul_f32 v10, s70, v10
        v_mul_f32 v11, s70, v11
        v_exp_f32 v10, v10
        v_exp_f32 v11, v11
        v_lshlrev_b32 v12, 16, v5
        v_and_b32 v13, s9, v5
        v_cvt_pk_bf16_f32 v10, v10, v11
        v_mul_f32 v12, v12, v9
        v_mul_f32 v13, v13, v9
        v_and_b32 v11, s9, v10
        v_lshlrev_b32 v10, 16, v10
        v_mul_f32 v12, {sgn}, v12
        v_mul_f32 v13, {sgn}, v13
        v_mul_f32 v10, v10, v9
        v_mul_f32 v11, v11, v9
        v_mul_f32 v10, {fh(-LOG2E)}, v10
        v_mul_f32 v11, {fh(-LOG2E)}, v11
        """)
    def direct(dst, p):
        a(f"""
        v_mul_f32 v{T}, {p}, v{ZR}
        v_mul_f32 v{T+1}, {p}, v{ZR+1}
        v_mul_f32 v{T+2}, {p}, v{ZI}
        v_mul_f32 v{T+3}, {p}, v{ZI+1}
        v_exp_f32 v{T}, v{T}
        v_exp_f32 v{T+1}, v{T+1}
        v_fract_f32 v{T+2}, v{T+2}
        v_fract_f32 v{T+3}, v{T+3}
        v_cos_f32 v{dst}, v{T+2}
        v_sin_f32 v{dst+1}, v{T+2}
        v_cos_f32 v{dst+2}, v{T+3}
        v_sin_f32 v{dst+3}, v{T+3}
        v_mul_f32 v{dst}, v{dst}, v{T}
        v_mul_f32 v{dst+1}, v{dst+1}, v{T}
        v_mul_f32 v{dst+2}, v{dst+2}, v{T+1}
        v_mul_f32 v{dst+3}, v{dst+3}, v{T+1}
        """)
    TM = 20
    tog = [0]
    def cmul2(dst, src, mul):
        for o in (0, 2):
            a(f"v_pk_mul_f32 {vr(TM+o,2)}, {vr(src+o,2)}, {vr(mul+o,2)} op_sel:[1,1] op_sel_hi:[0,1] neg_lo:[1,0]")
        for o in (0, 2):
            a(f"v_pk_fma_f32 {vr(dst+o,2)}, {vr(src+o,2)}, {vr(mul+o,2)}, {vr(TM+o,2)} op_sel:[0,0,0] op_sel_hi:[1,0,1]")
    def row(src, slot):
        p = 24 + 2 * tog[0]; tog[0] ^= 1
        a(f"v_cvt_pk_bf16_f32 v{p}, v{src}, v{src+1}")
        a(f"v_cvt_pk_bf16_f32 v{p+1}, v{src+2}, v{src+3}")
        a(f"ds_write_b64 v8, {vr(p,2)} offset:{slot*ROWS}")
    V, M1, M2, M4, M8, MB, U, W = 28, 32, 36, 40, 44, 48, 52, 56

    a(f"""
    s_movk_i32 s28, {US}
    v_lshrrev_b32 v5, 5, v0
    v_mad_u32_u24 v5, v5, s28, v2
    ds_write_b128 v5, v[24:27]
    s_lshl_b32 s24, s2, 3
    s_lshl_b32 s25, s4, 1
    s_add_u32 s24, s24, s25            ; tok0
    s_lshr_b32 s25, s24, 8
    s_lshl_b32 s25, s25, 11
    s_and_b32 s26, s4, 1
    s_lshl_b32 s26, s26, 10
    s_add_u32 s25, s25, s26
    s_bfe_u32 s26, s24, 0x60002
    s_lshl_b32 s26, s26, 4
    s_add_u32 s25, s25, s26
    s_add_u32 s25, s25, {hex(F_STATS)}
    s_mov_b32 s28, 0x3f803f80
    v_mov_b32 v28, {fh(1.0/512)}
    """)
    a(f"""
    {PRIO(3)}
    s_waitcnt lgkmcnt(0)
    """)
    tag_calc()
    a(f"""
    v_mov_b32 v35, s8
    v_mov_b32 v34, 0
    s_waitcnt vmcnt({2+pretouch})
    {ST(1)}
    """)
    for i in range(8):
        a(f"v_dot2c_f32_bf16 v24, s28, v{8+i}")
        a(f"v_dot2c_f32_bf16 v25, v{8+i}, v{8+i}")
    F = 40
    up = [l for i in range(8) for l in (f"v_lshlrev_b32 v{F+2*i}, 16, v{8+i}", f"v_and_b32 v{F+2*i+1}, s9, v{8+i}")]
    def fill(n):
        for _ in range(n):
            a(up.pop(0) if up else "s_nop 0")
    fill(3)
    a("v_permlane16_swap_b32 v24, v25")
    fill(1)
    a("v_add_f32 v24, v24, v25")
    for sh in (8, 4, 2, 1):
        fill(2)
        a(f"v_add_f32_dpp v24, v24, v24 row_ror:{sh} {DPP}")
    a("v_mov_b32 v25, v24")
    fill(2)
    a("v_permlane16_swap_b32 v24, v25")
    fill(2)
    a(f"""
    v_mul_f32 v24, v24, v28
    v_mul_f32 v25, v25, v28
    v_fma_f32 v26, -v24, v24, v25
    v_mul_f32 v25, {fh(1.0/256)}, v25
    v_cmp_lt_f32 vcc, v26, v25
    s_cbranch_vccnz L_EL_SLOWVAR
    L_EL_VAROK:
    v_cvt_pk_bf16_f32 v27, v24, v26
    v_and_b32 v26, s9, v27
    v_add_f32 v26, {fh(1e-5)}, v26
    v_lshlrev_b32 v30, 16, v27
    v_cvt_pk_bf16_f32 v26, v26, v26
    v_lshlrev_b32 v26, 16, v26
    v_sqrt_f32 v26, v26
    v_mov_b32 v36, 0
    v_cvt_pk_bf16_f32 v32, v30, v26
    v_and_b32 v26, s9, v32
    v_readlane_b32 s26, v32, 32
    v_rcp_f32 v38, v26
    s_mov_b64 exec, 1
    v_mov_b32 v33, s26
    buffer_store_dwordx4 v[32:35], v36, s[12:15], s25 offen sc1
    s_mov_b64 exec, -1
    {ST(2)}
    """)
    for i in range(8):
        a(f"v_pk_add_f32 {vr(F+2*i,2)}, {vr(F+2*i,2)}, v[30:31] op_sel_hi:[1,0] neg_lo:[0,1] neg_hi:[0,1]")
    for i in range(8):
        a(f"v_cvt_pk_bf16_f32 v{F+2*i+1}, v{F+2*i}, v{F+2*i+1}")
    for i in range(8):
        a(f"v_lshlrev_b32 v{F+2*i}, 16, v{F+2*i+1}")
        a(f"v_and_b32 v{F+2*i+1}, s9, v{F+2*i+1}")
    for i in range(8):
        a(f"v_pk_mul_f32 {vr(F+2*i,2)}, {vr(F+2*i,2)}, v[38:39] op_sel_hi:[1,0]")
    for i in range(8):
        a(f"v_cvt_pk_bf16_f32 v{8+i}, v{F+2*i}, v{F+2*i+1}")
    a(f"""
    v_mov_b32 v24, 0
    v_mov_b32 v25, 0
    s_waitcnt vmcnt({1+pretouch})
    """)
    for i in range(4):
        a(f"v_dot2c_f32_bf16 v24, v{8+2*i}, v{16+2*i}")
        a(f"v_dot2c_f32_bf16 v25, v{9+2*i}, v{17+2*i}")
    a(f"""
    v_lshrrev_b32 v26, 5, v0
    s_sub_u32 s26, 2047, s24
    v_sub_u32 v26, s26, v26
    v_add_f32 v24, v24, v25
    v_mov_b32 v27, {FLAGS+16*FS_KEY}
    s_nop 0
    v_add_f32_dpp v24, v24, v24 row_ror:8 {DPP}
    s_nop 1
    v_add_f32_dpp v24, v24, v24 row_ror:4 {DPP}
    s_nop 1
    v_add_f32_dpp v24, v24, v24 row_ror:2 {DPP}
    s_nop 1
    v_add_f32_dpp v24, v24, v24 row_ror:1 {DPP}
    s_mov_b32 s28, 0x80000000
    s_mov_b32 s29, 0x80000000
    v_add_f32_dpp v24, v24, v24 row_bcast:15 row_mask:0xa bank_mask:0xf
    v_cvt_pk_bf16_f32 v24, v24, v24
    v_ashrrev_i32 v25, 31, v24
    v_or_b32 v25, 0x80000000, v25
    v_xor_b32 v24, v24, v25
    v_and_or_b32 v24, v24, s9, v26
    s_mov_b64 exec, s[28:29]
    ds_max_rtn_u32 v25, v27, v24
    s_waitcnt lgkmcnt(0)
    v_min_u32 v25, v25, v24
    ds_max_u32 v27, v25 offset:4
    s_mov_b64 exec, 1
    ds_add_rtn_u32 v25, v27, v{vOne} offset:8
    ds_read_b64 v[32:33], v27
    ds_read_b32 v26, v27 offset:12
    s_lshl_b32 s25, s2, 4
    s_add_u32 s25, s25, {hex(F_KEYS)}
    v_mov_b32 v34, s8
    s_waitcnt lgkmcnt(0)
    v_cmp_eq_u32 vcc, 3, v25
    s_cbranch_vccz L_EL_NOKEY
    L_EL_KW:
    v_cmp_eq_u32 vcc, 4, v26
    s_cbranch_vccnz L_EL_KGO
    s_sub_u32 s3, s3, 1
    s_cbranch_scc1 L_END
    ds_read_b32 v26, v27 offset:12
    s_waitcnt lgkmcnt(0)
    s_branch L_EL_KW
    L_EL_KGO:
    buffer_store_dwordx4 v[32:35], v36, s[12:15], s25 offen sc1
    L_EL_NOKEY:
    s_mov_b64 exec, -1
    {PRIO(2)}
    {ST(3)}
    """)
    XW = [96, 97, 98, 99]
    vO = 76
    a(f"""
    L_E_X:
    v_lshlrev_b32 v{vO}, 12, v0
    s_lshl_b32 s30, s4, 18
    s_add_u32 s30, s30, s58
    """)
    if xmode:
        a(f"""
        v_and_b32 v2, 15, v0
        v_lshlrev_b32 v2, 2, v2
        s_lshl_b32 s10, s5, 9
        s_lshl_b32 s11, s4, 6
        s_add_u32 s10, s10, s11
        s_add_u32 s10, s10, {hex(F_XFLG)}
        s_mov_b32 s11, {xtries}
        L_E_XP:
        buffer_load_dword v3, v2, s[12:15], s10 offen sc1
        s_waitcnt vmcnt(0)
        v_cmp_ne_u32 vcc, s74, v3
        s_cbranch_vccz L_E_XOK
        s_sub_u32 s11, s11, 1
        s_cbranch_scc1 L_E_XG
        s_sleep 1
        s_branch L_E_XP
        L_E_XG:
        """)
    for r in range(4):
        a(f"buffer_load_dword v{XW[r]}, v{vO}, s[16:19], s30 offen offset:{1024*r}")
    if xmode:
        a(f"""
        s_branch L_E_X2
        L_E_XOK:
        buffer_load_dwordx4 v[96:99], v1, s[12:15], s75 offen sc1
        L_E_X2:
        """)
    a(f"""
    s_lshl_b32 s11, s4, 11
    s_add_u32 s11, s11, {hex(F_STATS)}
    s_cmp_eq_u32 s60, 0
    s_cbranch_scc1 L_E_S0
    s_cmp_ge_u32 s4, 4
    s_cbranch_scc1 L_F_W
    s_cmp_lg_u32 s4, {KW}
    s_cbranch_scc1 L_E_S0
    """)
    a(f"""
    L_K:
    s_mov_b32 s10, {hex(F_KEYS)}
    L_K_POLL:
    buffer_load_dwordx4 v[100:103], v1, s[12:15], s10 offen sc1
    buffer_load_dwordx4 v[104:107], v1, s[12:15], s10 offen offset:1024 sc1
    buffer_load_dwordx4 v[108:111], v1, s[12:15], s10 offen offset:2048 sc1
    buffer_load_dwordx4 v[112:115], v1, s[12:15], s10 offen offset:3072 sc1
    s_waitcnt vmcnt(0)
    v_xor_b32 v102, s8, v102
    v_xor_b32 v106, s8, v106
    v_xor_b32 v110, s8, v110
    v_xor_b32 v114, s8, v114
    v_or3_b32 v102, v102, v106, v110
    v_or_b32 v102, v102, v114
    v_cmp_ne_u32 vcc, 0, v102
    """)
    retry("L_K_POLL", cost=20, sleep=0)
    def merge(a0, a1, b0, b1):
        a(f"v_max_u32 v{a1}, v{a1}, v{b1}")
        a(f"v_med3_u32 v{a1}, v{a0}, v{b0}, v{a1}")
        a(f"v_max_u32 v{a0}, v{a0}, v{b0}")
    merge(100, 101, 104, 105); merge(108, 109, 112, 113); merge(100, 101, 108, 109)
    for sh in (8, 4, 2, 1):
        a(f"""
        s_nop 1
        v_mov_b32_dpp v102, v100 row_ror:{sh} {DPP}
        v_max_u32_dpp v101, v101, v101 row_ror:{sh} {DPP}
        v_med3_u32 v101, v100, v102, v101
        v_max_u32 v100, v100, v102
        """)
    a("s_nop 0")
    for k in range(4):
        a(f"v_readlane_b32 s{66+2*k}, v100, {16*k}")
        a(f"v_readlane_b32 s{67+2*k}, v101, {16*k}")
    def smerge(a0, a1, b0, b1):
        a(f"""
        s_max_u32 s{a1}, s{a1}, s{b1}
        s_min_u32 s{b1}, s{a0}, s{b0}
        s_max_u32 s{a1}, s{a1}, s{b1}
        s_max_u32 s{a0}, s{a0}, s{b0}
        """)
    smerge(66, 67, 68, 69); smerge(70, 71, 72, 73); smerge(66, 67, 70, 71)
    a(f"""
    s_or_b32 s66, s66, 0x8000
    s_or_b32 s67, s67, 0x8000
    v_mov_b32 v100, s66
    v_mov_b32 v101, s67
    v_mov_b32 v102, {FLAGS+16*FS_TOP}
    s_mov_b64 exec, 1
    ds_write_b64 v102, v[100:101]
    s_mov_b64 exec, -1
    {ST(5)}
    s_cmp_eq_u32 s60, 0
    s_cbranch_scc1 L_E_PRE
    s_branch L_E_S
    """)
    vU = 3
    XX, XN, MM, RS, G, T2 = 24, 32, 40, 48, 56, 64
    SW = [16, 17, 20, 21]
    def normalise():
        for r in range(4):
            a(f"v_and_b32 v{RS+2*r}, s9, v{SW[r]}")
            a(f"v_lshlrev_b32 v{MM+2*r}, 16, v{SW[r]}")
        for r in range(4):
            a(f"v_rcp_f32 v{RS+2*r}, v{RS+2*r}")
            a(f"v_lshlrev_b32 v{XX+2*r}, 16, v{XW[r]}")
            a(f"v_and_b32 v{XX+2*r+1}, s9, v{XW[r]}")
        for r in range(4):
            a(f"v_pk_add_f32 {vr(XN+2*r,2)}, {vr(XX+2*r,2)}, {vr(MM+2*r,2)} op_sel_hi:[1,0] neg_lo:[0,1] neg_hi:[0,1]")
        for r in range(4):
            a(f"v_cvt_pk_bf16_f32 v{XN+2*r+1}, v{XN+2*r}, v{XN+2*r+1}")
        for r in range(4):
            a(f"v_lshlrev_b32 v{XN+2*r}, 16, v{XN+2*r+1}")
            a(f"v_and_b32 v{XN+2*r+1}, s9, v{XN+2*r+1}")
        for r in range(4):
            a(f"v_pk_mul_f32 {vr(XN+2*r,2)}, {vr(XN+2*r,2)}, {vr(RS+2*r,2)} op_sel_hi:[1,0]")
        a(f"""
        s_lshl_b32 s24, s4, 9
        v_lshlrev_b32 v{vU}, 3, v0
        v_cvt_pk_bf16_f32 v8, v{XN}, v{XN+2}
        v_cvt_pk_bf16_f32 v9, v{XN+4}, v{XN+6}
        v_add_u32 v{vU}, s24, v{vU}
        v_cvt_pk_bf16_f32 v10, v{XN+1}, v{XN+3}
        v_cvt_pk_bf16_f32 v11, v{XN+5}, v{XN+7}
        ds_write_b64 v{vU}, v[8:9] offset:512
        ds_write_b64 v{vU}, v[10:11] offset:{US+512}
        ds_write_b32 v{vFl}, v{vOne} offset:{16*FS_U}
        """)
    a(f"""
    L_E_S0:
    s_cmp_lt_u32 s4, {npoll}
    s_cbranch_scc1 L_E_S
    v_mov_b32 v2, {FLAGS+16*FS_U}
    L_E_SPU:
    ds_read_b32 v3, v2
    s_waitcnt lgkmcnt(0)
    v_cmp_eq_u32 vcc, 0, v3
    """)
    retry("L_E_SPU")
    a(f"""
    L_E_S:
    buffer_load_dwordx4 v[16:19], v1, s[12:15], s11 offen sc1
    buffer_load_dwordx4 v[20:23], v1, s[12:15], s11 offen offset:1024 sc1
    s_waitcnt vmcnt(0)
    v_xor_b32 v19, s8, v19
    v_xor_b32 v23, s8, v23
    v_or_b32 v19, v19, v23
    v_cmp_ne_u32 vcc, 0, v19
    """)
    retry("L_E_S", cost=20, sleep=0)
    a(ST(4))
    normalise()
    a(f"""
    s_cmp_lg_u32 s4, {KW}
    s_cbranch_scc1 L_E_PRE
    s_cmp_eq_u32 s60, 0
    s_cbranch_scc1 L_K
    """)
    a(f"""
    L_E_PRE:
    v_lshlrev_b32 v{XN}, 16, v8
    v_and_b32 v{XN+2}, s9, v8
    v_lshlrev_b32 v{XN+4}, 16, v9
    v_and_b32 v{XN+6}, s9, v9
    v_lshlrev_b32 v{XN+1}, 16, v10
    v_and_b32 v{XN+3}, s9, v10
    v_lshlrev_b32 v{XN+5}, 16, v11
    v_and_b32 v{XN+7}, s9, v11
    s_mov_b32 s24, {fh(-LOG2E)}
    s_mov_b32 s20, s{S_OUT}
    s_mov_b32 s21, s{S_OUT+1}
    s_mov_b32 s22, 0x200000
    """)
    for i in range(4):
        a(f"v_pk_mul_f32 {vr(T2+2*i,2)}, {vr(XN+2*i,2)}, s[24:25] op_sel_hi:[1,0]")
    vDr, vFs = 5, 6
    fillers = [
        f"v_lshrrev_b32 v12, 2, v0",
        f"v_and_b32 v13, 3, v0",
        f"v_lshl_add_u32 v12, v13, 2, v12",
        f"v_and_b32 v12, 15, v12",
        f"v_lshl_add_u32 v12, v13, 4, v12",
        f"v_lshlrev_b32 v{vDr}, 4, v12",
        f"v_add_u32 v{vO+1}, 1024, v{vO}",
        f"v_add_u32 v{vO+2}, 2048, v{vO}",
    ]
    for i in range(8):
        a(f"v_exp_f32 v{T2+i}, v{T2+i}")
        a(fillers[i])
    a(f"""
    s_lshl_b32 s26, s4, 11
    s_add_u32 s26, s26, {KR}
    v_add_u32 v{vDr}, s26, v{vDr}
    s_lshl_b32 s26, s4, 4
    s_add_u32 s26, s26, {FLAGS}
    v_lshl_add_u32 v{vFs}, v13, 2, s26
    """)
    for i in range(4):
        a(f"v_pk_add_f32 {vr(T2+2*i,2)}, {vr(T2+2*i,2)}, 1.0 op_sel_hi:[1,0]")
    for i in range(8):
        a(f"v_rcp_f32 v{G+i}, v{T2+i}")
    a(f"""
    s_lshl_b32 s24, s59, 16
    s_and_b32 s25, s59, s9
    v_add_u32 v{vO+3}, 3072, v{vO}
    """)
    for i in range(4):
        a(f"v_pk_mul_f32 {vr(T2+2*i,2)}, {vr(XN+2*i,2)}, s[24:25]")
    for i in range(4):
        a(f"v_pk_mul_f32 {vr(G+2*i,2)}, {vr(G+2*i,2)}, {vr(XN+2*i,2)}")
    for i in range(4):
        a(f"v_pk_fma_f32 {vr(XX+2*i,2)}, {vr(T2+2*i,2)}, {vr(G+2*i,2)}, {vr(XX+2*i,2)}")
    a(f"""
    s_cmp_lt_u32 s4, 4
    s_cbranch_scc1 L_E_SPD
    v_mov_b32 v14, {FLAGS+16*FS_TOP}
    L_E_SPT:
    ds_read_b64 v[16:17], v14
    s_waitcnt lgkmcnt(0)
    v_readfirstlane_b32 s28, v16
    v_readfirstlane_b32 s29, v17
    v_cmp_eq_u32 vcc, 0, v16
    """)
    retry("L_E_SPT")
    a(f"""
    s_and_b32 s28, s28, 0x7ff
    s_and_b32 s29, s29, 0x7ff
    s_lshl_b32 s26, s4, 8
    s_sub_u32 s26, 2047, s26
    s_sub_u32 s28, s26, s28
    s_sub_u32 s29, s26, s29
    s_min_u32 s26, s28, s29
    s_cmp_ge_u32 s26, 256
    s_cbranch_scc1 L_E_SPD
    v_bfrev_b32 v12, 1
    """)
    for r in range(4):
        a(f"""
        v_lshl_add_u32 v13, v0, 2, {r}
        v_cmp_eq_u32 vcc, s28, v13
        v_cmp_eq_u32 s[24:25], s29, v13
        s_or_b64 vcc, vcc, s[24:25]
        v_cndmask_b32 v{vO+r}, v{vO+r}, v12, vcc
        """)
    Y = 8
    a(f"""
    L_E_SPD:
    ds_read_b32 v72, v{vFs}
    s_waitcnt lgkmcnt(0)
    v_cmp_eq_u32 vcc, 0, v72
    """)
    retry("L_E_SPD", sleep=opt.get("dsleep", 1))
    a(f"""
    ds_read_b128 {vr(Y,4)}, v{vDr}
    ds_read_b128 {vr(Y+4,4)}, v{vDr} offset:1024
    ds_read_b128 {vr(Y+8,4)}, v{vDr} offset:{KRS}
    ds_read_b128 {vr(Y+12,4)}, v{vDr} offset:{KRS+1024}
    s_waitcnt lgkmcnt(0)
    """)
    for r in range(4):
        a(f"v_add_f32 v{T2+2*r}, v{Y+r}, v{Y+4+r}")
        a(f"v_add_f32 v{T2+2*r+1}, v{Y+8+r}, v{Y+12+r}")
    for r in range(4):
        a(f"v_pk_fma_f32 {vr(XX+2*r,2)}, {vr(T2+2*r,2)}, {vr(G+2*r,2)}, {vr(XX+2*r,2)}")
    for r in range(4):
        a(f"v_cvt_pk_bf16_f32 v{72+r}, v{XX+2*r}, v{XX+2*r+1}")
    if pace:
        a(f"""
        s_cmp_lt_u32 s4, {pace}
        s_cbranch_scc1 L_E_ST
        s_lshl_b32 s26, s4, 2
        s_add_u32 s26, s26, {FLAGS+16*FS_PACE-4*pace}
        v_mov_b32 v12, s26
        L_E_SPP:
        ds_read_b32 v13, v12
        s_waitcnt lgkmcnt(0)
        v_cmp_eq_u32 vcc, 0, v13
        """)
        retry("L_E_SPP")
        a("L_E_ST:")
    a(ST(6))
    for r in range(4):
        a(f"buffer_store_dword v{72+r}, v{vO+r}, s[20:23], s30 offen")
    a(f"""
    s_waitcnt vmcnt(0)
    ds_write_b32 v{vFl}, v{vOne} offset:{16*FS_PACE}
    s_cmp_lg_u32 s4, {KW}
    s_cbranch_scc1 L_END
    """)
    a(f"""
    v_cmp_gt_u32 vcc, 32, v0
    v_mov_b32 v162, s67
    v_mov_b32 v3, s66
    v_cndmask_b32 v162, v162, v3, vcc
    v_and_b32 v161, 0x7ff, v162
    v_sub_u32 v161, 2047, v161
    s_add_u32 s68, s12, {hex(F_PART)}
    s_addc_u32 s69, s13, 0
    s_mov_b32 s70, {NSLICE*4096}
    s_mov_b32 s71, 0x00020000
    v_lshlrev_b32 v1, 12, v0
    v_add_u32 v2, 0x40000, v1
    s_lshl_b32 s26, s7, 4
    v_bfe_u32 v5, v0, 4, 1
    v_lshlrev_b32 v44, 10, v161
    v_lshl_add_u32 v44, v5, 1, v44
    buffer_load_ushort v25, v44, s[16:19], s58 offen
    v_mul_u32_u24 v40, {US}, v5
    v_lshl_add_u32 v40, v161, 1, v40
    v_lshrrev_b32 v7, 8, v161
    v_lshlrev_b32 v42, 4, v7
    v_add_u32 v42, {FLAGS}, v42
    v_mul_u32_u24 v43, {KRS}, v5
    v_lshl_add_u32 v43, v7, 11, v43
    v_bfe_u32 v8, v161, 2, 2
    v_bfe_u32 v9, v161, 4, 4
    v_lshl_add_u32 v9, v8, 2, v9
    v_and_b32 v9, 15, v9
    v_lshl_add_u32 v9, v8, 4, v9
    v_lshl_add_u32 v43, v9, 4, v43
    v_and_b32 v8, 3, v161
    v_lshl_add_u32 v43, v8, 2, v43
    v_add_u32 v43, {KR}, v43
    v_ashrrev_i32 v8, 31, v162
    v_not_b32 v8, v8
    v_or_b32 v8, 0x80000000, v8
    v_xor_b32 v6, v162, v8
    v_and_b32 v6, s9, v6
    v_mul_f32 v6, {fh(-LOG2E)}, v6
    v_exp_f32 v6, v6
    v_lshlrev_b32 v8, 4, v5
    v_add_f32 v6, 1.0, v6
    v_rcp_f32 v6, v6
    v_lshrrev_b32 v45, v8, s59
    v_cmp_gt_u32 vcc, {NSLICE-64}, v0
    v_cvt_pk_bf16_f32 v6, v6, v6
    v_lshlrev_b32 v45, 16, v45
    v_lshlrev_b32 v46, 16, v6
    v_mov_b32 v47, s8
    v_cndmask_b32 v47, 0, v47, vcc
    v_mov_b32 v48, {FLAGS+16*FS_PACE}
    s_mov_b32 s24, 0x0c0c0400
    s_mov_b32 s25, 0x04000c0c
    s_mov_b32 s28, 0xffffff00
    L_F_POLL:
    buffer_load_dwordx4 v[8:11], v1, s[68:71], s26 offen sc1
    buffer_load_dwordx4 v[12:15], v2, s[68:71], s26 offen sc1
    s_waitcnt vmcnt(0)
    v_perm_b32 v16, v9, v8, s24
    v_perm_b32 v17, v11, v10, s25
    v_perm_b32 v18, v13, v12, s24
    v_perm_b32 v19, v15, v14, s25
    v_or_b32 v16, v16, v17
    v_or_b32 v18, v18, v19
    v_xor_b32 v16, s8, v16
    v_xor_b32 v18, v47, v18
    v_or_b32 v16, v16, v18
    v_cmp_ne_u32 vcc, 0, v16
    """)
    retry("L_F_POLL", cost=20, sleep=opt.get("fsleep", 2))
    a(ST(2))
    for i in range(8):
        a(f"v_and_b32 v{8+i}, s28, v{8+i}")
    a(f"""
    v_pk_add_f32 v[8:9], v[8:9], v[12:13]
    v_pk_add_f32 v[10:11], v[10:11], v[14:15]
    L_F_SPY:
    ds_read_b128 v[20:23], v42
    ds_read_b128 v[28:31], v48
    ds_read_u16 v24, v40 offset:512
    ds_read_b32 v26, v43
    ds_read_b32 v27, v43 offset:1024
    s_waitcnt lgkmcnt(0)
    v_min3_u32 v20, v20, v28, v29
    v_min3_u32 v21, v21, v30, v31
    """)
    spin_quad(20, "L_F_SPY")
    a(f"""
    v_permlane32_swap_b32 v8, v10
    v_permlane32_swap_b32 v9, v11
    v_lshlrev_b32 v24, 16, v24
    v_add_f32 v8, v8, v10
    v_add_f32 v9, v9, v11
    v_lshlrev_b32 v25, 16, v25
    v_add_f32 v26, v26, v27
    v_permlane16_swap_b32 v8, v9
    v_fma_f32 v26, v24, v45, v26
    v_add_f32 v8, v8, v9
    s_nop 1
    v_add_f32_dpp v8, v8, v8 row_ror:8 {DPP}
    s_nop 1
    v_add_f32_dpp v8, v8, v8 row_ror:4 {DPP}
    s_nop 1
    v_add_f32_dpp v8, v8, v8 row_ror:2 {DPP}
    s_nop 1
    v_add_f32_dpp v8, v8, v8 row_ror:1 {DPP}
    v_cvt_pk_bf16_f32 v8, v8, v8
    v_lshlrev_b32 v8, 16, v8
    v_mul_f32 v8, v8, v46
    v_cvt_pk_bf16_f32 v8, v8, v8
    v_lshlrev_b32 v8, 16, v8
    v_add_f32 v8, v8, v24
    v_cvt_pk_bf16_f32 v8, v8, v8
    v_lshlrev_b32 v8, 16, v8
    v_mul_f32 v9, {fh(-LOG2E)}, v8
    v_exp_f32 v9, v9
    s_mov_b32 s24, 0x00010001
    v_add_f32 v9, 1.0, v9
    v_rcp_f32 v9, v9
    s_mov_b32 s25, 0x00010001
    v_mul_f32 v8, v8, v9
    v_fma_f32 v8, v8, v26, v25
    v_cvt_pk_bf16_f32 v8, v8, v8
    v_mov_b32 v10, {F_EPOCH}
    v_mov_b32 v11, s8
    s_mov_b64 exec, s[24:25]
    buffer_store_short v8, v44, s[20:23], s58 offen
    s_cmp_lg_u32 s2, 0
    s_cbranch_scc1 L_END
    s_mov_b64 exec, 1
    buffer_store_dword v11, v10, s[12:15], 0 offen
    """)
    a.end("L_END")
    a("""
    L_EL_SLOWVAR:
    v_mov_b32 v26, 0
    """)
    for i in range(16):
        a(f"v_sub_f32 v27, v{F+i}, v24")
        a(f"v_fmac_f32 v26, v27, v27")
    for sh in (8, 4, 2, 1):
        a("s_nop 1")
        a(f"v_add_f32_dpp v26, v26, v26 row_ror:{sh} {DPP}")
    a("""
    v_mov_b32 v27, v26
    s_nop 1
    v_permlane16_swap_b32 v26, v27
    s_nop 0
    v_add_f32 v26, v26, v27
    v_mul_f32 v26, v26, v28
    s_branch L_EL_VAROK
    """)

    def prefetch_w():
        a(f"""
        s_cmp_eq_u32 s61, 0
        s_cselect_b32 s64, s{S_WG}, s{S_WU}
        s_cselect_b32 s65, s{S_WG+1}, s{S_WU+1}
        s_cmp_ge_u32 s61, 2
        s_cselect_b32 s64, s{S_WD}, s64
        s_cselect_b32 s65, s{S_WD+1}, s65
        s_mov_b32 s66, {512*2752}
        s_mov_b32 s67, 0x00020000
        v_lshrrev_b32 v60, 2, v0
        v_mul_u32_u24 v60, 2752, v60
        v_and_b32 v61, 3, v0
        v_lshlrev_b32 v61, 7, v61
        v_min_u32 v61, 348, v61
        v_add_u32 v60, v60, v61
        s_mul_i32 s68, s6, {16*2752}
        s_mul_i32 s69, s5, 352
        s_add_u32 s68, s68, s69
        s_cmp_lt_u32 s61, 2
        s_cbranch_scc1 L_EF_PF
        v_min_u32 v60, 21, v0
        v_lshlrev_b32 v60, 7, v60
        s_mul_i32 s68, s5, {176*1024}
        s_mul_i32 s69, s6, {44*128}
        s_add_u32 s68, s68, s69
        s_and_b32 s69, s61, 1
        s_mul_i32 s69, s69, {22*128}
        s_add_u32 s68, s68, s69
        L_EF_PF:
        buffer_load_dword v167, v60, s[64:67], s68 offen
        """)
    a("L_EF:")
    if pf_early:
        prefetch_w()
    nextra = pretouch + pf_early
    a(f"""
    v_and_b32 v3, 3, v0
    v_lshlrev_b32 v6, 9, v3
    v_and_b32 v7, 60, v0
    v_add3_u32 v6, v6, v7, s62
    v_lshlrev_b32 v7, 11, v7
    v_lshl_add_u32 v7, v3, 4, v7
    s_lshl_b32 s28, s5, 18
    s_lshl_b32 s29, s6, 8
    s_add_u32 s28, s28, s29
    s_lshl_b32 s29, s61, 6
    s_add_u32 s28, s28, s29
    s_add_u32 s28, s28, {hex(F2_XX)}
    s_add_u32 s29, s28, 0x20000
    s_lshl_b32 s10, s5, 9
    s_lshl_b32 s11, s6, 4
    s_add_u32 s10, s10, s11
    s_lshl_b32 s11, s61, 2
    s_add_u32 s10, s10, s11
    s_add_u32 s10, s10, {hex(F_XFLG)}
    v_mov_b32 v9, {FLAGS+16*FS_KEY+12}
    {PRIO(3)}
    s_waitcnt lgkmcnt(0)
    s_mov_b64 exec, 1
    ds_add_u32 v9, v{vOne}
    s_mov_b64 exec, -1
    """)
    tag_calc()
    a(f"""
    v_mov_b32 v56, 0
    v_mov_b32 v57, s74
    s_waitcnt vmcnt({nextra})
    {ST(1)}
    """)
    if xmode:
        a(f"""
        ds_read2_b32 v[48:49], v6 offset0:0 offset1:32
        ds_read2_b32 v[50:51], v6 offset0:64 offset1:96
        ds_read2_b32 v[52:53], v6 offset0:16 offset1:48
        ds_read2_b32 v[54:55], v6 offset0:80 offset1:112
        s_waitcnt lgkmcnt(2)
        buffer_store_dwordx4 v[48:51], v7, s[12:15], s28 offen
        s_waitcnt lgkmcnt(0)
        buffer_store_dwordx4 v[52:55], v7, s[12:15], s29 offen
        s_waitcnt vmcnt(0)
        s_mov_b64 exec, 1
        buffer_store_dword v57, v56, s[12:15], s10 offen
        s_mov_b64 exec, -1
        """)
    if not pf_early:
        prefetch_w()
    a(f"""
    {ST(2)}
    {PRIO(0)}
    s_cmp_eq_u32 s60, 0
    s_cbranch_scc1 L_E_X
    s_waitcnt vmcnt(0)
    """)
    WD, WP, BW = 100, 116, 132
    a(f"""
    s_mov_b32 s20, s{S_WG}
    s_mov_b32 s21, s{S_WG+1}
    s_mov_b32 s22, {512*2752}
    s_mov_b32 s24, s{S_WU}
    s_mov_b32 s25, s{S_WU+1}
    s_mov_b32 s26, {512*2752}
    s_mov_b32 s64, s{S_WD}
    s_mov_b32 s65, s{S_WD+1}
    s_lshl_b32 s10, s61, 7
    v_lshrrev_b32 v2, 1, v0
    v_add_u32 v2, s10, v2
    v_mul_u32_u24 v2, 2752, v2
    v_and_b32 v3, 1, v0
    v_lshl_add_u32 v2, v3, 4, v2
    s_lshl_b32 s10, s63, 5
    s_lshl_b32 s29, s61, 13
    s_add_u32 s29, s29, {FW}
    """)
    for i in range(4):
        a(f"""
        s_add_u32 s28, s29, {1024*i}
        s_mov_b32 m0, s28
        s_add_u32 s28, s28, 4096
        buffer_load_dwordx4 v2, s[20:23], s10 offen lds
        s_mov_b32 m0, s28
        s_nop 0
        buffer_load_dwordx4 v2, s[24:27], s10 offen lds
        s_add_u32 s10, s10, {32*2752}
        """)
    a(f"""
    s_lshl_b32 s73, s61, 8
    v_lshlrev_b32 v166, 2, v0
    v_add_u32 v166, s73, v166
    s_lshl_b32 s10, s63, 14
    """)
    for i in range(16):
        a(f"buffer_load_dword v{WD+i}, v166, s[64:67], s10 offen offset:{1024*(i%4)}")
        if i % 4 == 3 and i < 15:
            a("s_add_u32 s10, s10, 4096")
    a(f"""
    v_lshrrev_b32 v5, 4, v0
    v_bfe_u32 v6, v0, 2, 2
    v_lshl_add_u32 v6, v5, 3, v6
    v_lshlrev_b32 v6, 5, v6
    v_and_b32 v7, 3, v0
    v_lshl_add_u32 v6, v7, 3, v6
    v_add_u32 v6, s29, v6
    s_mov_b32 s10, 0x05040100
    s_mov_b32 s28, 0x07060302
    s_waitcnt vmcnt(16)
    """)
    for m in range(2):
        for ks in range(4):
            r = BW + 16 * m + 4 * ks
            a(f"ds_read_b64_tr_b16 {vr(r,2)}, v6 offset:{4096*m+1024*ks}")
            a(f"ds_read_b64_tr_b16 {vr(r+2,2)}, v6 offset:{4096*m+1024*ks+128}")
        if m == 0:
            a("s_waitcnt lgkmcnt(4)")
    a("s_waitcnt vmcnt(0)")
    for p in range(8):
        a(f"v_perm_b32 v{WP+2*p}, v{WD+2*p+1}, v{WD+2*p}, s10")
        a(f"v_perm_b32 v{WP+2*p+1}, v{WD+2*p+1}, v{WD+2*p}, s28")
    a(f"""
    {ST(3)}
    s_branch L_E_X
    L_F_W:
    v_lshrrev_b32 v2, 5, v0
    v_lshlrev_b32 v2, 2, v2
    v_add_u32 v2, {FLAGS+16*FS_TOP}, v2
    v_and_b32 v3, 31, v0
    v_lshlrev_b32 v3, 3, v3
    s_mov_b32 s25, {hex(F_STATS)}
    v_lshlrev_b32 v12, 3, v0
    v_add_u32 v12, s62, v12
    v_and_b32 v13, 4, v0
    v_lshlrev_b32 v13, 6, v13
    v_and_b32 v14, 48, v0
    v_add3_u32 v13, v13, v14, s62
    v_and_b32 v7, 31, v0
    v_lshlrev_b32 v7, 5, v7
    v_add_u32 v7, {FP}, v7
    v_lshrrev_b32 v14, 5, v0
    v_lshl_add_u32 v14, v14, 4, v7
    s_lshl_b32 s24, s61, 2
    v_add_u32 v14, s24, v14
    v_mov_b32 v15, {FLAGS+16*FS_FFN}
    v_mov_b32 v{WD}, 0
    v_mov_b32 v{WD+1}, 0
    v_mov_b32 v{WD+2}, 0
    v_mov_b32 v{WD+3}, 0
    s_lshl_b32 s29, s63, 12
    s_add_u32 s29, s29, {hex(F_PART)}
    v_lshlrev_b32 v166, 2, v166
    s_and_b32 s68, s8, 0xff
    s_bfe_u32 s69, s8, 0x80008
    s_bfe_u32 s70, s8, 0x80010
    s_lshr_b32 s71, s8, 24
    v_mov_b32 v104, 0xffffff00
    L_F_SPT:
    ds_read_b32 v4, v2
    s_waitcnt lgkmcnt(0)
    v_cmp_eq_u32 vcc, 0, v4
    """)
    retry("L_F_SPT", sleep=1)
    a(f"""
    {PRIO(3)}
    v_and_b32 v4, 0x7ff, v4
    v_sub_u32 v4, 2047, v4
    v_lshl_add_u32 v5, v4, 10, v3
    buffer_load_dwordx2 v[88:89], v5, s[16:19], s73 offen
    v_lshrrev_b32 v5, 8, v4
    v_lshlrev_b32 v5, 11, v5
    v_bfe_u32 v6, v4, 1, 1
    v_lshl_add_u32 v5, v6, 10, v5
    v_bfe_u32 v6, v4, 2, 6
    v_lshl_add_u32 v5, v6, 4, v5
    v_and_b32 v4, 1, v4
    L_F_S:
    buffer_load_dwordx4 v[92:95], v5, s[12:15], s25 offen sc1
    buffer_load_dwordx4 v[16:19], v1, s[12:15], s11 offen sc1
    buffer_load_dwordx4 v[20:23], v1, s[12:15], s11 offen offset:1024 sc1
    s_waitcnt vmcnt(0)
    v_xor_b32 v19, s8, v19
    v_xor_b32 v23, s8, v23
    v_xor_b32 v95, s8, v95
    v_or3_b32 v19, v19, v23, v95
    v_cmp_ne_u32 vcc, 0, v19
    """)
    retry("L_F_S", cost=20, sleep=0)
    a(f"""
    {ST(4)}
    v_cmp_eq_u32 vcc, 1, v4
    v_lshlrev_b32 v72, 16, v88
    v_and_b32 v73, s9, v88
    v_cndmask_b32 v80, v92, v93, vcc
    v_lshlrev_b32 v74, 16, v89
    v_and_b32 v75, s9, v89
    v_and_b32 v82, s9, v80
    v_lshlrev_b32 v80, 16, v80
    v_rcp_f32 v82, v82
    v_pk_add_f32 v[72:73], v[72:73], v[80:81] op_sel_hi:[1,0] neg_lo:[0,1] neg_hi:[0,1]
    v_pk_add_f32 v[74:75], v[74:75], v[80:81] op_sel_hi:[1,0] neg_lo:[0,1] neg_hi:[0,1]
    v_cvt_pk_bf16_f32 v73, v72, v73
    v_cvt_pk_bf16_f32 v75, v74, v75
    v_lshlrev_b32 v72, 16, v73
    v_and_b32 v73, s9, v73
    v_lshlrev_b32 v74, 16, v75
    v_and_b32 v75, s9, v75
    v_pk_mul_f32 v[72:73], v[72:73], v[82:83] op_sel_hi:[1,0]
    v_pk_mul_f32 v[74:75], v[74:75], v[82:83] op_sel_hi:[1,0]
    v_cmp_gt_u32 vcc, 32, v0
    v_cvt_pk_bf16_f32 v72, v72, v73
    v_cvt_pk_bf16_f32 v73, v74, v75
    ds_write_b64 v12, v[72:73]
    ds_read_b128 v[56:59], v13
    ds_read_b128 v[60:63], v13 offset:64
    ds_read_b128 v[64:67], v13 offset:128
    ds_read_b128 v[68:71], v13 offset:192
    """)
    for ks in range(4):
        a(f"s_waitcnt lgkmcnt({3-ks})")
        for m in range(2):
            acc = vr(88 + 4 * m, 4)
            a(f"v_mfma_f32_16x16x32_bf16 {acc}, {vr(56+4*ks,4)}, {vr(BW+16*m+4*ks,4)}, {acc if ks else 0}")
    a(f"""
    s_nop 7
    v_cndmask_b32 v80, v92, v88, vcc
    ds_write_b32 v14, v80
    ds_write_b32 v{vFl}, v{vOne} offset:{16*FS_FFN-16}
    """)
    normalise()
    a(f"""
    L_F_SP:
    ds_read_b128 v[72:75], v15
    ds_read_b128 v[80:83], v7
    ds_read_b128 v[84:87], v7 offset:16
    s_waitcnt lgkmcnt(0)
    """)
    spin_quad(72, "L_F_SP")
    a(f"""
    v_add_f32 v80, v80, v81
    v_add_f32 v82, v82, v83
    v_add_f32 v84, v84, v85
    v_add_f32 v86, v86, v87
    v_add_f32 v80, v80, v82
    v_add_f32 v84, v84, v86
    v_cvt_pk_bf16_f32 v81, v80, v84
    v_lshlrev_b32 v80, 16, v81
    v_mul_f32 v82, {fh(-LOG2E)}, v80
    v_exp_f32 v82, v82
    v_and_b32 v84, s9, v81
    v_add_f32 v82, 1.0, v82
    v_rcp_f32 v82, v82
    s_nop 0
    v_mul_f32 v80, v80, v82
    v_cvt_pk_bf16_f32 v80, v80, v80
    v_lshlrev_b32 v80, 16, v80
    v_mul_f32 v80, v80, v84
    s_nop 1
    v_mov_b32_dpp v81, v80 quad_perm:[1,0,3,2] {DPP}
    v_cvt_pk_bf16_f32 v80, v80, v81
    s_nop 0
    """)
    SH = 32
    for i in range(16):
        a(f"v_readlane_b32 s{SH+i}, v80, {2*i}")
    for p in range(8):
        for tok in range(2):
            for ch in range(2):
                a(f"v_dot2c_f32_bf16 v{WD+2*tok+ch}, s{SH+8*tok+p}, v{WP+2*p+ch}")
    a(f"""
    s_nop 2
    v_and_or_b32 v{WD}, v{WD}, v104, s68
    v_and_or_b32 v{WD+1}, v{WD+1}, v104, s69
    v_and_or_b32 v{WD+2}, v{WD+2}, v104, s70
    v_and_or_b32 v{WD+3}, v{WD+3}, v104, s71
    buffer_store_dwordx4 {vr(WD,4)}, v166, s[12:15], s29 offen sc1
    {ST(5)}
    {PRIO(0)}
    s_branch L_E_PRE
    """)

    vFr = 166
    a("L_M:")
    a(f"""
    s_mov_b32 s3, {SPIN_BUDGET}
    s_mov_b32 s9, 0xffff0000
    v_mov_b32 v{vOne}, 1
    s_and_b32 s61, s4, 1
    s_mul_i32 s63, s60, {KRS}
    s_add_u32 s63, s63, {KR}
    v_lshlrev_b32 v8, 3, v0
    v_add_u32 v8, s63, v8
    s_lshl_b32 s11, s60, 4
    s_mov_b32 s72, {fh(INV2PI)}
    s_mov_b32 s71, {fh(-INV2PI)}
    s_cmp_eq_u32 s61, 0
    s_cselect_b32 s72, s71, s72
    s_mov_b32 s71, {fh(8.0)}
    s_cselect_b32 s71, 1.0, s71
    """)
    flag_addr(vFl, "s4", 74)
    a(f"""
    s_xor_b32 s74, s4, 1
    s_lshl_b32 s74, s74, 2
    s_add_u32 s74, s74, {FLAGS}
    v_mov_b32 v{vFr}, s74
    {PRIO(1)}
    s_waitcnt lgkmcnt(0)
    """)
    kg_setup("s73", "s11", -1)
    a(f"""
    s_waitcnt vmcnt({2+codepf})
    {STM(1)}
    """)
    kg_setup2("s72")
    direct(M1, "s71")
    a("""
    s_cmp_eq_u32 s61, 0
    s_cbranch_scc1 L_M_ALPHA
    """)
    a(f"""
    v_mov_b32 v{V}, 1.0
    v_mov_b32 v{V+1}, 0
    v_mov_b32 v{V+2}, 1.0
    v_mov_b32 v{V+3}, 0
    s_mov_b32 s74, 0
    L_M_BLOOP:
    """)
    for i in range(4):
        row(V, 32 + i)
        cmul2(V, V, M1)
    a(f"""
    v_add_u32 v8, {4*ROWS}, v8
    s_add_u32 s74, s74, 1
    s_cmp_lt_u32 s74, 8
    s_cbranch_scc1 L_M_BLOOP
    s_branch L_M_ROWS
    L_M_ALPHA:
    """)
    direct(MB, fh(256.0))
    a(f"""
    v_add_f32 v9, v9, v9
    s_waitcnt vmcnt({codepf})
    v_lshlrev_b32 v{V}, 16, v6
    v_lshlrev_b32 v{V+1}, 16, v7
    v_and_b32 v{V+2}, s9, v6
    v_and_b32 v{V+3}, s9, v7
    v_mul_f32 v{V}, v{V}, v9
    v_mul_f32 v{V+1}, -v{V+1}, v9
    v_mul_f32 v{V+2}, v{V+2}, v9
    v_mul_f32 v{V+3}, -v{V+3}, v9
    """)
    cmul2(M2, M1, M1)
    cmul2(U, V, MB)
    row(V, 0)
    cmul2(M4, M2, M2)
    for i in range(1, 11):
        cmul2(V, V, M1); row(V, i)
    cmul2(M8, M4, M4)
    row(U, 11)
    cmul2(W, U, M2); row(W, 12)
    for i in range(13, 17):
        cmul2(W, W, M2); row(W, i)
    for k in range(2):
        cmul2(U, U, MB); row(U, 17 + 3 * k)
        cmul2(W, U, M4); row(W, 18 + 3 * k)
        cmul2(W, U, M8); row(W, 19 + 3 * k)
    for k in range(4):
        cmul2(U, U, MB); row(U, 23 + 2 * k)
        cmul2(W, U, M8); row(W, 24 + 2 * k)
    a(f"""
    L_M_ROWS:
    ds_write_b32 v{vFl}, v{vOne} offset:{16*FS_KROW}
    {STM(2)}
    v_and_b32 v3, 31, v0
    v_lshrrev_b32 v4, 5, v0
    v_lshrrev_b32 v5, 3, v3
    v_bfe_u32 v6, v3, 2, 1
    v_and_b32 v7, 3, v3
    v_add_u32 v10, v5, v6
    v_lshlrev_b32 v10, 2, v10
    v_lshl_add_u32 v11, v6, 1, 11
    v_mad_u32_u24 v12, v6, 3, 17
    v_cmp_eq_u32 vcc, 2, v5
    v_lshl_add_u32 v13, v6, 2, 23
    s_cmp_eq_u32 s61, 0
    v_cndmask_b32 v10, v10, v11, vcc
    v_cmp_eq_u32 vcc, 3, v5
    s_cselect_b64 s[76:77], -1, 0
    s_nop 0
    v_cndmask_b32 v10, v10, v12, vcc
    v_cndmask_b32 v10, v13, v10, s[76:77]
    v_add_u32 v10, v10, v7
    v_mul_u32_u24 v1, {ROWS}, v10
    v_mul_u32_u24 v2, {ROWS}, v3
    v_lshlrev_b32 v11, 4, v4
    v_add3_u32 v1, v1, v11, s63
    v_add3_u32 v2, v2, v11, s63
    s_mul_i32 s74, s60, {4*KCS}
    s_add_u32 s74, s74, {KI}
    v_lshlrev_b32 v10, 4, v3
    v_lshl_add_u32 v11, v4, 3, v10
    v_sub_u32 v11, {2*(2044-256)}, v11
    v_add_u32 v11, s74, v11
    v_lshl_add_u32 v12, v4, 9, v10
    v_sub_u32 v12, {2*(2040-512)}, v12
    v_add_u32 v12, s74, v12
    v_lshl_add_u32 v13, v4, 10, v10
    v_sub_u32 v13, {2*(2040-1280)}, v13
    v_add_u32 v13, s74, v13
    v_and_b32 v10, 1, v3
    v_cmp_eq_u32 s[76:77], 1, v10
    v_bfe_u32 v14, v0, 2, 2
    v_mul_u32_u24 v14, {KCS}, v14
    v_lshl_add_u32 v14, v7, 4, v14
    v_add_u32 v14, s74, v14
    v_mov_b32 v16, 0
    v_mov_b32 v17, 0
    v_mov_b32 v18, 0
    v_mov_b32 v19, 0
    s_cmp_eq_u32 s61, 0
    s_cbranch_scc0 L_M_SP1
    ds_write_b128 v14, v[16:19] offset:4096
    L_M_SP1:
    ds_read_b32 v14, v{vFr} offset:{16*FS_KROW}
    s_waitcnt lgkmcnt(0)
    v_cmp_eq_u32 vcc, 0, v14
    """)
    retry("L_M_SP1", sleep=0)
    ACC, FR, NB = 16, 32, 6
    def rd(s):
        r = FR + 8 * (s % NB)
        a(f"ds_read_b128 {vr(r,4)}, v1 offset:{32*s}")
        a(f"ds_read_b128 {vr(r+4,4)}, v2 offset:{32*ROWS + 32*s}")
    for s in range(NB):
        rd(s)
    a("v_cmp_eq_u32 vcc, 63, v0")
    for s in range(16):
        rem = min(15 - s, NB - 1)
        a(f"s_waitcnt lgkmcnt({2*rem})")
        r = FR + 8 * (s % NB)
        c = "0" if s == 0 else vr(ACC, 16)
        a(f"v_mfma_f32_32x32x16_bf16 {vr(ACC,16)}, {vr(r,4)}, {vr(r+4,4)}, {c}")
        if s + NB < 16:
            rd(s + NB)
    vA, vF, vD, vG, vUF = 1, 2, 3, 4, 5
    SLOT0, NSLOT, ACC0 = 8, 31, 132
    a(f"""
    v_and_b32 v84, 15, v0
    v_lshrrev_b32 v85, 4, v0
    v_and_b32 v86, 3, v84
    v_lshrrev_b32 v87, 2, v84
    s_lshl_b32 s75, s61, 8
    s_sub_u32 s74, s74, s75
    s_add_u32 s74, s74, {2*2028 - 64*59 + 8}
    v_mul_u32_u24 v{vA}, {KCS}, v86
    v_lshl_add_u32 v{vA}, v85, 4, v{vA}
    v_cmp_eq_u32 s[64:65], 3, v86
    v_lshlrev_b32 v87, 3, v87
    v_add_u32 v88, 8, v87
    v_cndmask_b32 v87, v87, v88, s[64:65]
    v_sub_u32 v{vA}, v{vA}, v87
    v_add_u32 v{vA}, s74, v{vA}
    s_mul_i32 s74, s60, {US}
    s_sub_u32 s74, s74, s75
    s_add_u32 s74, s74, {512 - 32 - 192}
    v_lshl_add_u32 v86, v84, 1, v85
    v_lshlrev_b32 v86, 4, v86
    v_add_u32 v{vF}, s74, v86
    v_lshl_add_u32 v86, v85, 2, v84
    v_and_b32 v86, 15, v86
    v_lshl_add_u32 v86, v85, 4, v86
    v_lshlrev_b32 v86, 4, v86
    s_lshl_b32 s74, s61, 10
    s_add_u32 s74, s74, s63
    v_add_u32 v{vD}, s74, v86
    v_mov_b32 v{vUF}, {FLAGS+16*FS_U}
    {STM(3)}
    s_cmp_eq_u32 s61, 0
    s_cbranch_scc0 L_M_T2
    """)
    d = lambda i: f"v{ACC+i}"
    preg = [32]
    def alloc(n):
        r = preg[0]; preg[0] += n
        return r
    def write4(w, addr, extra):
        for c in range(4):
            o = (c + 1) % 4
            p = alloc(2)
            a(f"v_cvt_pk_bf16_f32 v{p}, {w[o+3]}, {w[o+2]}")
            a(f"v_cvt_pk_bf16_f32 v{p+1}, {w[o+1]}, {w[o]}")
            a(f"ds_write_b64 v{addr}, {vr(p,2)} offset:{c*KCS+extra}")
    def write8(w, addr, extra):
        for c in range(4):
            o = (c + 1) % 4
            p = alloc(4)
            for k in range(4):
                a(f"v_cvt_pk_bf16_f32 v{p+k}, {w[o+7-2*k]}, {w[o+6-2*k]}")
            a(f"ds_write_b128 v{addr}, {vr(p,4)} offset:{c*KCS+extra}")
    a(f"v_cndmask_b32 {d(5)}, {d(5)}, {d(4)}, vcc")
    a(f"v_cndmask_b32 {d(11)}, {d(11)}, {d(10)}, vcc")
    write4([d(i) for i in range(7)], 11, 512)
    p = alloc(6)
    a(f"""
    v_cvt_pk_bf16_f32 v{p}, {d(0)}, 0
    v_cvt_pk_bf16_f32 v{p+1}, {d(1)}, {d(0)}
    v_cvt_pk_bf16_f32 v{p+2}, {d(2)}, {d(1)}
    v_mov_b32 v{p+3}, v{p}
    s_mov_b64 exec, 1
    ds_write_b32 v11, v{p} offset:{512+8}
    ds_write_b32 v11, v{p+1} offset:{KCS+512+8}
    ds_write_b64 v11, {vr(p+2,2)} offset:{2*KCS+512+8}
    s_mov_b64 exec, -1
    """)
    write4([d(8), d(8), d(9), d(10), d(10), d(10), d(11)], 11, 0)
    a("s_waitcnt lgkmcnt(4)")
    write8([d(12)] * 3 + [d(13)] * 3 + [d(14)] * 5, 12, 0)
    a("s_branch L_M_IMG")
    a("L_M_T2:")
    preg[0] = 32
    for k in range(2):
        r0, r1 = d(2 * k), d(2 * k + 1)
        x = alloc(2)
        a(f"v_cndmask_b32 v{x}, {r0}, {r1}, s[76:77]")
        write8([r0] * 4 + [f"v{x}"] + [r1] * 6, 13, 512 if k == 0 else 0)
    a(f"""
    L_M_IMG:
    ds_write_b32 v{vFl}, v{vOne} offset:{16*FS_KIMG}
    L_M_SP2:
    ds_read_b32 v14, v{vFr} offset:{16*FS_KIMG}
    s_waitcnt lgkmcnt(0)
    v_cmp_eq_u32 vcc, 0, v14
    """)
    retry("L_M_SP2", sleep=0)
    a(STM(4))
    HELD = 5
    mf = []
    for j in range(8):
        for s_ in range(8 - j):
            for tp in range(4):
                mf.append((s_, j, tp, ("A", s_, tp, 0 if s_ <= HELD else j), ("F", j, tp, 0)))
    first, last, lastacc = {}, {}, {}
    for idx, m in enumerate(mf):
        for fr in (m[3], m[4]):
            first.setdefault(fr, idx); last[fr] = idx
        lastacc[m[0] + m[1]] = idx
    free = list(range(NSLOT))
    slot, ready_at = {}, {}
    opno, done, gate = [0], [0], [-1]
    def room(n): return opno[0] + n - done[0] <= 15
    def wait_for(op):
        if op > done[0]:
            a(f"s_waitcnt lgkmcnt({opno[0]-op})"); done[0] = op
    def issue(fr):
        kind, b, tp, _ = fr
        sl = free.pop(0); slot[fr] = sl
        r = SLOT0 + 4 * sl
        if kind == "A":
            off = 64 * (59 - 8 * b - tp)
            a(f"ds_read_b64 {vr(r,2)}, v{vA} offset:{off}")
            a(f"ds_read_b64 {vr(r+2,2)}, v{vA} offset:{off+8}")
            opno[0] += 2
        else:
            a(f"ds_read_b128 {vr(r,4)}, v{vF} offset:{64*(3-tp)+512*b}")
            opno[0] += 1
        ready_at[fr] = opno[0]
    pend = sorted(first, key=lambda fr: first[fr])
    def prefetch(maxn, cur):
        n = 0
        for fr in list(pend):
            if n >= maxn: break
            if fr[0] == "F" and fr[1] > gate[0]: continue
            if first[fr] > cur + 24: break
            need_before = sum(1 for g in pend if g is not fr and first[g] < first[fr])
            if len(free) <= need_before: break
            if not room(2 if fr[0] == "A" else 1): break
            issue(fr); pend.remove(fr); n += 1
    pending_w = []
    def flush_writes(force=False):
        for pw in list(pending_w):
            if pw[1] <= 0 or force:
                if force and pw[1] > 0:
                    a(f"s_nop {pw[1]-1}")
                if not room(2): wait_for(opno[0] - 13)
                nb = pw[0]
                a(f"ds_write_b128 v{vD}, {vr(ACC0+4*nb,4)} offset:{2048*nb}")
                a(f"ds_write_b32 v{vFl}, v{vOne} offset:{16*nb}")
                opno[0] += 2
                pending_w.remove(pw)
    gate_read = {}
    def gate_issue(j):
        if not room(1): wait_for(opno[0] - 14)
        a(f"ds_read_b32 v{vG}, v{vUF} offset:{4*j}")
        opno[0] += 1
        gate_read[j] = opno[0]
    def gate_check(j):
        flush_writes(force=True)
        wait_for(gate_read[j])
        lab, ok = a.uid("L_G"), a.uid("L_GOK")
        a(f"""
        {lab}:
        v_cmp_eq_u32 vcc, 0, v{vG}
        s_cbranch_vccz {ok}
        s_sub_u32 s3, s3, 1
        s_cbranch_scc1 L_END
        ds_read_b32 v{vG}, v{vUF} offset:{4*j}
        s_waitcnt lgkmcnt(0)
        s_branch {lab}
        {ok}:
        """)
        gate[0] = j
    a(PRIO(opt.get("cprio", 1)))
    npre = opt.get("npre", 2)
    for fr in list(pend):
        if fr[0] == "A" and fr[1] < npre:
            if not room(2): wait_for(opno[0] - 8)
            issue(fr); pend.remove(fr)
    gate_issue(0); gate_check(0)
    a(STM(5))
    stage_start = {}
    for idx, m in enumerate(mf):
        stage_start.setdefault(m[1], idx)
    chk_at, iss_at = {}, {}
    for j in range(1, 8):
        ln = stage_start[j] - stage_start[j - 1]
        c = stage_start[j] - min(8, max(0, ln - 12))
        chk_at[c] = j
        iss_at[max(stage_start[j - 1], c - 6)] = j
    started = set()
    prefetch(100, 0)
    for idx, (s_, j_, tp, fa, ff) in enumerate(mf):
        if opt.get("mst", 0) and idx == stage_start[j_] and j_ in (0, 1, 2, 3, 4, 6):
            a(ST({0: 1, 1: 2, 2: 3, 3: 4, 4: 5, 6: 6}[j_]))
        if idx in chk_at:
            gate_check(chk_at[idx]); prefetch(4, idx)
        if idx in iss_at:
            gate_issue(iss_at[idx])
        while fa not in slot or ff not in slot:
            fr = fa if fa not in slot else ff
            if not room(2): wait_for(opno[0] - 12)
            assert free, "no slot"
            issue(fr); pend.remove(fr)
        wait_for(max(ready_at[fa], ready_at[ff]))
        nb = s_ + j_
        acc = vr(ACC0 + 4 * nb, 4)
        c = acc if nb in started else "0"
        started.add(nb)
        a(f"v_mfma_f32_16x16x32_bf16 {acc}, {vr(SLOT0+4*slot[fa],4)}, {vr(SLOT0+4*slot[ff],4)}, {c}")
        for pw in pending_w: pw[1] -= 1
        for fr in (fa, ff):
            if last[fr] == idx: free.append(slot[fr])
        if lastacc[nb] == idx: pending_w.append([nb, 8])
        flush_writes()
        prefetch(1, idx)
    flush_writes(force=True)
    a(STM(6))
    a("L_END:")
    a.stamp_dump(WS_STAMP, 12, 256)
    a("s_endpgm")
    a("L_CODE_END:")
    hdr = open("recurrent_scan__ssm_conv_s4d__moe_arch_mod__prompt.s.ref").read().split("; Override")[0]
    hdr += f"; @launch grid=(256,1,1) block=(768,1,1) lds={LDS}\n"
    txt = hdr + a.text() + '.section .rodata,"a"\n' + kernel_desc(NAME, 168, 102 if stamps else 80)
    open(out, "w").write(txt)

if __name__ == "__main__":
    opt = {}
    for x in sys.argv[2:]:
        if "=" in x:
            k, v = x.split("="); opt[k] = int(v)
    gen(sys.argv[1], "--stamps" in sys.argv, opt)
```
